```python
import torch

def _softmax(x, axis=-1):
    return torch.softmax(x, dim=axis)
def _gelu(x):
    return torch.nn.functional.gelu(x, approximate="tanh")
def _silu(x):
    return torch.nn.functional.silu(x)
def _sigmoid(x):
    return torch.sigmoid(x)
def _layernorm(x, axis=-1, eps=1e-5):
    m = x.mean(dim=axis, keepdim=True)
    v = x.var(dim=axis, keepdim=True, unbiased=False)
    return (x - m) / torch.sqrt(v + eps)
def _scatter_add(tgt, idx, src, axis=0):
    return tgt.clone().index_add_(axis, idx, src)
def _segment_sum(src, seg, n):
    out = torch.zeros((n,) + src.shape[1:], dtype=src.dtype)
    return out.index_add_(0, seg, src)
def _pad(x, pw):
    flat = tuple(v for pair in reversed(pw) for v in pair)
    return torch.nn.functional.pad(x, flat)

kernel_name = 'sequential_preLN__linear_kernel_hedgehog__glu_gated_bilinear__prompt'

def setup_inputs():

    _w = (lambda a: (lambda t: t.to(torch.bfloat16) if t.is_floating_point() else t)(torch.as_tensor(a)))
    def _A_setup():
        B, S, D, H = 1, 2048, 512, 32
        Dh = D // H
        return {
            "x": _w((lambda *s: torch.randn(*s, dtype=torch.bfloat16) * 0.05)(B, S, D)),
            "wqkv": _w((lambda *s: torch.randn(*s, dtype=torch.bfloat16) * 0.2)(D, 3 * D)),
            "w_phi": _w((lambda *s: torch.randn(*s, dtype=torch.bfloat16) * 0.2)(H, Dh, Dh) * (Dh ** -0.5)),
            "wo": _w((lambda *s: torch.randn(*s, dtype=torch.bfloat16) * 0.05)(D, D)),
        }
    _A_in = _A_setup()

    def _B_setup():
        B, S, D, F = 1, 2048, 512, 1792
        return {
            "x": _w((lambda *s: torch.randn(*s, dtype=torch.bfloat16) * 0.05)(B, S, D)),
            "w_gate": _w((lambda *s: torch.randn(*s, dtype=torch.bfloat16) * 0.4)(D, F) * (D ** -0.5)),
            "w_up": _w((lambda *s: torch.randn(*s, dtype=torch.bfloat16) * 0.4)(D, F) * (D ** -0.5)),
            "w_down": _w((lambda *s: torch.randn(*s, dtype=torch.bfloat16) * 0.4)(F, D) * (F ** -0.5)),
        }
    _B_in = _B_setup()

    return {
        "A_x": _A_in["x"],
        "A_wqkv": _A_in["wqkv"],
        "A_w_phi": _A_in["w_phi"],
        "A_wo": _A_in["wo"],
        "B_x": _B_in["x"],
        "B_w_gate": _B_in["w_gate"],
        "B_w_up": _B_in["w_up"],
        "B_w_down": _B_in["w_down"],
    }

def reference(A_x, A_wqkv, A_w_phi, A_wo, B_x, B_w_gate, B_w_up, B_w_down):
    def _A_ref(x, wqkv, w_phi, wo):
        B, S, D = x.shape
        H = 32; Dh = D // H
        qkv = (lambda x, *d: x.permute(*d))((x @ wqkv).reshape(B, S, 3, H, Dh), 2, 0, 3, 1, 4)
        q, k, v = qkv[0], qkv[1], qkv[2]
        pq = torch.einsum("bhsd,hdf->bhsf", q, w_phi)
        pk = torch.einsum("bhsd,hdf->bhsf", k, w_phi)
        phi_q = torch.concatenate([_softmax(pq, axis=-1), _softmax(-pq, axis=-1)], axis=-1)
        phi_k = torch.concatenate([_softmax(pk, axis=-1), _softmax(-pk, axis=-1)], axis=-1)
        kv = torch.einsum("bhsf,bhsd->bhfd", phi_k, v)
        z  = torch.einsum("bhsf->bhf", phi_k)
        num = torch.einsum("bhqf,bhfd->bhqd", phi_q, kv)
        den = torch.einsum("bhqf,bhf->bhq", phi_q, z)[..., None] + 1e-6
        o = num / den
        return (lambda x, *d: x.permute(*d))(o, 0, 2, 1, 3).reshape(B, S, D) @ wo

    def _B_ref(x, w_gate, w_up, w_down):
        g = torch.einsum("bsd,df->bsf", x, w_gate)
        u = torch.einsum("bsd,df->bsf", x, w_up)
        h = g * u
        return torch.einsum("bsf,fd->bsd", h, w_down)

    x = A_x
    h = x + _A_ref(_layernorm(x, axis=-1), A_wqkv, A_w_phi, A_wo)
    h2 = h + _B_ref(_layernorm(h, axis=-1), B_w_gate, B_w_up, B_w_down)
    return h2
```

```python
import re

TRANS = ("v_exp_f32", "v_log_f32", "v_rcp_f32", "v_rsq_f32", "v_sqrt_f32", "v_sin_f32", "v_cos_f32")


def regs_of(tok):
    tok = tok.strip()
    tok = tok.lstrip("-")
    if tok.startswith("abs(") or tok.startswith("neg("):
        tok = tok[4:-1]
    if tok.startswith("|"):
        tok = tok.strip("|")
    m = re.fullmatch(r"([vsa])\[(\d+):(\d+)\]", tok)
    if m:
        return [(m.group(1), i) for i in range(int(m.group(2)), int(m.group(3)) + 1)]
    m = re.fullmatch(r"([vsa])(\d+)", tok)
    if m:
        return [(m.group(1), int(m.group(2)))]
    if tok in ("vcc", "vcc_lo", "vcc_hi"):
        return [("vcc", 0)]
    if tok in ("exec", "exec_lo", "exec_hi"):
        return [("exec", 0)]
    if tok == "m0":
        return [("m0", 0)]
    return []


class Ins:
    __slots__ = ("text", "op", "defs", "uses", "kind", "srcC", "srcAB", "lds_dma", "wide_store", "tag")

    def __init__(self, text, tag=None):
        self.text = text
        self.tag = tag
        t = text.split(";")[0].strip()
        parts = t.split(None, 1)
        self.op = op = parts[0]
        rest = parts[1] if len(parts) > 1 else ""
        ops = [o.strip() for o in re.split(r",\s*(?![^\[]*\])", rest)] if rest else []
        clean = []
        mods = []
        for o in ops:
            w = o.split()
            if w:
                clean.append(w[0])
                mods += w[1:]
        ops = clean
        self.defs = []
        self.uses = []
        self.srcC = []
        self.srcAB = []
        self.lds_dma = False
        self.wide_store = []
        R = regs_of
        if op.endswith(":") or op.startswith("."):
            self.kind = "label" if op.endswith(":") else "dir"
            return
        if op.startswith("v_mfma"):
            self.kind = "mfma"
            self.defs = R(ops[0])
            self.srcAB = R(ops[1]) + R(ops[2])
            self.srcC = R(ops[3])
            self.uses = self.srcAB + self.srcC
        elif op.startswith("buffer_load") or op.startswith("global_load"):
            self.kind = "vm"
            if "lds" in mods or "_lds_" in op:
                self.lds_dma = True
                for o in ops:
                    self.uses += R(o)
                self.uses += [("m0", 0)]
            else:
                self.defs = R(ops[0])
                for o in ops[1:]:
                    self.uses += R(o)
                if "d16" in op:
                    self.uses += R(ops[0])
        elif op.startswith("buffer_store") or op.startswith("global_store"):
            self.kind = "vm"
            for o in ops:
                self.uses += R(o)
            if "x4" in op or "x3" in op:
                self.wide_store = R(ops[0]) if op.startswith("buffer") else R(ops[1])
        elif op.startswith("buffer_atomic") or op.startswith("global_atomic"):
            self.kind = "vm"
            for o in ops:
                self.uses += R(o)
            if "sc0" in mods:
                self.defs = R(ops[0])
        elif op.startswith("ds_read") or op.startswith("ds_bpermute") or op.startswith("ds_swizzle") or "_rtn" in op:
            self.kind = "ds"
            self.defs = R(ops[0])
            for o in ops[1:]:
                self.uses += R(o)
        elif op.startswith("ds_"):
            self.kind = "ds"
            for o in ops:
                self.uses += R(o)
        elif op.startswith("s_load") or op in ("s_memrealtime", "s_memtime"):
            self.kind = "smem"
            self.defs = R(ops[0])
            for o in ops[1:]:
                self.uses += R(o)
        elif op.startswith("v_"):
            self.kind = "valu"
            base = op
            if base.startswith("v_cmp"):
                self.defs = R(ops[0])
                for o in ops[1:]:
                    self.uses += R(o)
            elif base.startswith("v_permlane") and "swap" in base:
                self.defs = R(ops[0]) + R(ops[1])
                self.uses = R(ops[0]) + R(ops[1])
            elif "_co_" in base:
                self.defs = R(ops[0]) + R(ops[1])
                for o in ops[2:]:
                    self.uses += R(o)
            else:
                self.defs = R(ops[0])
                for o in ops[1:]:
                    self.uses += R(o)
                if base.startswith("v_fmac") or base.startswith("v_dot2c") or "dpp" in base or base.startswith("v_writelane"):
                    self.uses += R(ops[0])
                if base.startswith("v_cndmask") and len(ops) == 3:
                    self.uses += [("vcc", 0)]
        elif op.startswith("s_"):
            if op in ("s_waitcnt", "s_nop", "s_barrier", "s_endpgm", "s_sleep", "s_setprio", "s_branch") or op.startswith("s_cbranch"):
                self.kind = "branch" if (op == "s_branch" or op.startswith("s_cbranch")) else "sctl"
                if "vcc" in op:
                    self.uses = [("vcc", 0)]
                if "exec" in op:
                    self.uses = [("exec", 0)]
            else:
                self.kind = "salu"
                if op.startswith("s_cmp") or op.startswith("s_bitcmp"):
                    for o in ops:
                        self.uses += R(o)
                else:
                    self.defs = R(ops[0])
                    for o in ops[1:]:
                        self.uses += R(o)
                    if "saveexec" in op:
                        self.defs += [("exec", 0)]
                        self.uses += [("exec", 0)]
                    if op.startswith("s_addk") or op.startswith("s_mulk"):
                        self.uses += R(ops[0])
        else:
            raise ValueError("unknown op: " + text)


class Stream:
    def __init__(self, name):
        self.name = name
        self.items = []
        self.ntok = 0
        self.nlab = 0

    def __call__(self, text, tag=None):
        for l in text.split("\n"):
            l = l.strip()
            if l:
                self.items.append(Ins(l, tag))

    def label(self, base="L"):
        self.nlab += 1
        return f"{self.name}_{base}_{self.nlab}"

    def mark(self):
        self.ntok += 1
        t = f"t{self.ntok}"
        self.items.append(("mark", t))
        return t

    def wait_vm(self, tok):
        self.items.append(("waitvm", tok))

    def wait_ds(self, tok):
        self.items.append(("waitds", tok))

    def shadow_begin(self):
        self.items.append(("shadow", True))

    def shadow_end(self):
        self.items.append(("shadow", False))

    def comment(self, s):
        self.items.append(("comment", s))

    def finalize(self):
        out = self._waits()
        out = self._hazards(out)
        lines = []
        for it in out:
            if isinstance(it, Ins):
                lines.append(it.text if it.kind == "label" else "    " + it.text)
            else:
                lines.append("    ; " + it[1])
        return "\n".join(lines) + "\n"

    def _waits(self):
        out = []
        vm_seq = 0
        ds_seq = 0
        vm_done = 0
        ds_done = 0
        pend = {}
        marks = {}
        smem_out = False
        shadow = False

        def emit_wait(vm=None, ds=None, sm=False):
            nonlocal vm_done, ds_done, smem_out
            parts = []
            if vm is not None and vm >= vm_done:
                n = min(63, vm_seq - 1 - vm)
                parts.append(f"vmcnt({n})")
                vm_done = max(vm_done, vm_seq - n)
            if sm:
                parts.append("lgkmcnt(0)")
                ds_done = ds_seq
                smem_out = False
                for r in [r for r, p in pend.items() if p[0] == "sm"]:
                    del pend[r]
            elif ds is not None and ds >= ds_done:
                n = min(15, ds_seq - 1 - ds)
                parts.append(f"lgkmcnt({n})")
                ds_done = max(ds_done, ds_seq - n)
            if parts:
                out.append(Ins("s_waitcnt " + " ".join(parts)))

        for it in self.items:
            if not isinstance(it, Ins):
                k = it[0]
                if k == "mark":
                    marks[it[1]] = (vm_seq - 1, ds_seq - 1)
                elif k == "waitvm":
                    emit_wait(vm=marks[it[1]][0])
                elif k == "waitds":
                    emit_wait(ds=marks[it[1]][1])
                elif k == "shadow":
                    shadow = it[1]
                elif k == "comment":
                    out.append(it)
                continue
            if it.op == "s_waitcnt":
                m = re.search(r"vmcnt\((\d+)\)", it.text)
                if m:
                    vm_done = max(vm_done, vm_seq - int(m.group(1)))
                m = re.search(r"lgkmcnt\((\d+)\)", it.text)
                if m:
                    n = int(m.group(1))
                    ds_done = max(ds_done, ds_seq - n)
                    if n == 0:
                        for r in [r for r, p in pend.items() if p[0] == "sm"]:
                            del pend[r]
                out.append(it)
                continue
            need_vm = need_ds = None
            need_sm = False
            for r in it.uses + it.defs:
                p = pend.get(r)
                if p is None:
                    continue
                if p[0] == "vm" and p[1] >= vm_done:
                    need_vm = p[1] if need_vm is None else max(need_vm, p[1])
                elif p[0] == "ds" and p[1] >= ds_done:
                    need_ds = p[1] if need_ds is None else max(need_ds, p[1])
                elif p[0] == "sm":
                    need_sm = True
            if need_vm is not None or need_ds is not None or need_sm:
                assert not shadow, "auto wait inside shadow block: " + it.text
                emit_wait(need_vm, need_ds, need_sm)
            out.append(it)
            if shadow:
                assert not it.defs or it.kind not in ("vm", "ds"), "load in shadow"
                continue
            if it.kind == "vm":
                for r in it.defs:
                    pend[r] = ("vm", vm_seq)
                vm_seq += 1
            elif it.kind == "ds":
                for r in it.defs:
                    pend[r] = ("ds", ds_seq)
                ds_seq += 1
            elif it.kind == "smem":
                if it.tag != "stamp":
                    for r in it.defs:
                        pend[r] = ("sm", 0)
        return out

    def _hazards(self, items):
        out = []
        pos = 0
        hist = []

        def req(p, c):
            need = 0
            pd = set(p.defs)
            if p.kind == "mfma":
                np_ = 12 if "32x32" in p.op else 8
                if c.kind == "mfma":
                    if pd & set(c.srcAB):
                        need = max(need, np_)
                    if pd & set(c.srcC):
                        if not (c.srcC == p.defs and ("32x32" in p.op) == ("32x32" in c.op)):
                            need = max(need, np_ - 2)
                    elif pd & set(c.defs):
                        need = max(need, np_)
                elif c.kind in ("valu", "vm", "ds"):
                    if pd & (set(c.uses) | set(c.defs)):
                        need = max(need, np_)
                if c.kind == "valu" and set(p.srcC) & set(c.defs):
                    need = max(need, 7 if "32x32" in p.op else 3)
            elif p.kind == "valu":
                vd = {r for r in pd if r[0] == "v"}
                sd = {r for r in pd if r[0] in ("s", "vcc")}
                isdot = p.op.startswith("v_dot")
                if c.kind == "mfma" and vd & set(c.uses):
                    need = max(need, 3 if isdot else 2)
                if isdot and c.kind in ("valu", "vm", "ds"):
                    if c.op == p.op:
                        t = c.text.split(None, 1)[1].split(",")
                        ab = regs_of(t[1]) + regs_of(t[2].split()[0])
                        if vd & set(ab):
                            need = max(need, 3)
                    elif vd & (set(c.uses) | set(c.defs)):
                        need = max(need, 3)
                if c.kind == "valu":
                    if p.op.split("_e")[0] in TRANS and vd & set(c.uses) and c.op.split("_e")[0] not in TRANS:
                        need = max(need, 1)
                    if (c.op.startswith("v_permlane") or "dpp" in c.op) and vd & set(c.uses):
                        need = max(need, 2)
                    if (c.op.startswith("v_readfirstlane") or c.op.startswith("v_readlane")) and vd & set(c.uses):
                        need = max(need, 1)
                    if sd & set(c.uses):
                        need = max(need, 2)
                if c.kind == "vm" and sd & set(c.uses):
                    need = max(need, 5)
                if c.kind in ("salu", "branch") and sd & set(c.uses):
                    need = max(need, 2)
            elif p.kind == "salu":
                if ("m0", 0) in pd and c.kind == "vm" and c.lds_dma:
                    need = max(need, 1)
            elif p.kind == "vm" and p.wide_store:
                if set(p.wide_store) & set(c.defs):
                    need = max(need, 2)
            return need

        def maxpending():
            m = 0
            for p, pp in hist:
                if p.kind == "mfma":
                    m = max(m, (12 if "32x32" in p.op else 8) - (pos - pp))
                elif p.kind == "valu":
                    sd = any(r[0] in ("s", "vcc") for r in p.defs)
                    m = max(m, (5 if sd else 3) - (pos - pp))
                elif p.kind == "salu" and ("m0", 0) in p.defs:
                    m = max(m, 1 - (pos - pp))
                elif p.kind == "vm" and p.wide_store:
                    m = max(m, 2 - (pos - pp))
            return m

        def pad(n):
            nonlocal pos
            while n > 0:
                k = min(n, 16)
                out.append(Ins(f"s_nop {k-1}"))
                pos += k
                n -= k

        for it in items:
            if not isinstance(it, Ins):
                out.append(it)
                continue
            if it.kind == "dir":
                out.append(it)
                continue
            if it.kind == "label":
                out.append(it)
                continue
            need = 0
            for p, pp in hist:
                r = req(p, it)
                if r:
                    need = max(need, r - (pos - pp))
            if it.kind == "branch" and it.tag != "nopad":
                need = max(need, maxpending() - 1)
            if need > 0:
                pad(need)
            out.append(it)
            if it.op == "s_nop":
                pos += int(it.text.split()[1]) + 1
            else:
                pos += 1
            hist.append((it, pos))
            hist = [(p, pp) for p, pp in hist if pos - pp < 20]
        return out
```

```python
SC = 155648
SC_STAT, SC_PHI, SC_CS = 1024, 2048, 4096
C_WQ, C_QDONE, C_WO, C_WOREAD, C_O, C_FAST = 0, 1, 2, 3, 4, 5
P1SLOT = 24576
WQ_BASE = 49152
WO_LDS = [122880, 131072, 139264, 0, 8192, 16384, 24576, 32768, 40960, 147456, 114688,
          49152, 57344, 65536, 73728, 81920]
A_CH, AU_OFF = 12416, 6272
A_SPLIT = 49152
O_LDS = 99328
B_SLOT = [132096, 99328, 115712, 0, 16384, 32768, 49152, 65536]
D_SLOT = {(0, 0): 81920, (0, 1): 132096, (1, 0): 99328, (1, 1): 115712, (2, 0): 0, (2, 1): 16384,
          (3, 0): 32768, (3, 1): 49152, (4, 0): 65536, (4, 1): 81920, (5, 0): 132096, (5, 1): 99328,
          (6, 0): 115712, (6, 1): 0}
X_LDS = 16384
WS_XCC, WS_FLO, WS_FLH, WS_FLA, WS_FLB = 0x1000, 0x2000, 0x3000, 0x4000, 0x5000
WS_KVF, WS_HST, WS_KVP = 0x10000, 0x40000, 0x100000
WS_O, WS_H, WS_HH = 0x400000, 0x600000, 0x800000
KVP_STRIDE = 8704
```

```python
import sys, os
sys.path.insert(0, os.path.dirname(os.path.abspath(__file__)))
from kb import Stream
from layout import *

NAME = "sequential_preLN__linear_kernel_hedgehog__glu_gated_bilinear__prompt"
STAMPS = "--stamps" in sys.argv
SKIP_STAMPS = os.environ.get("SKIP_STAMPS", "qgemm,o0,b10,sA").split(",")
FORCE_SLOW = "--slow" in sys.argv

sWAVE, sXCD, sJ, sQUAD, sRB64 = 3, 4, 5, 6, 7
rX, rW, rWO, rWG, rWU, rWD, rWS, rOUT, rPHI = 8, 12, 16, 20, 24, 28, 32, 36, 40
PTR = dict(x=48, w=50, phi=52, wo=54, wg=58, wu=60, wd=62, out=44, ws=46)
SIZES = dict(x=2097152, w=1572864, phi=16384, wo=524288, wg=1835008, wu=1835008, wd=1835008, out=2097152,
             ws=0x10000000)
sT = 96
sFAST = 97
sA, sB, sC, sD, sE, sF = 98, 99, 100, 101, 1, 0
sSPIN = 95
STAMP0 = 64
SPIN_MAX = int(os.environ.get("SPIN_MAX", 1 << 14))

LOG2E = 0x3FB8AA3B


def S(r, n=4):
    return f"s[{r}:{r+n-1}]"


def V(r, n=4):
    return f"v[{r}:{r+n-1}]" if n > 1 else f"v{r}"


def mk_srd(a, r, name):
    p = PTR[name]
    a(f"s_mov_b32 s{r}, s{p}")
    a(f"s_and_b32 s{r+1}, s{p+1}, 0xffff")
    a(f"s_mov_b32 s{r+2}, {SIZES[name]}")
    a(f"s_mov_b32 s{r+3}, 0x20000")


class Role(Stream):
    def __init__(self, name, ridx):
        super().__init__(name)
        self.nst = 0
        self.ridx = ridx
        self.stnames = []

    def stamp(self, nm):
        if STAMPS and nm not in SKIP_STAMPS:
            assert self.nst < 15
            r = STAMP0 + 2 * self.nst
            self(f"s_memrealtime s[{r}:{r+1}]", tag="stamp")
            self.nst += 1
            self.stnames.append(nm)

    def dump_stamps(self, lead_wave):
        if not STAMPS:
            return
        a = self
        sk = a.label("nost")
        a("s_waitcnt lgkmcnt(0)")
        a(f"s_cmp_lg_u32 s{sWAVE}, {lead_wave}")
        a(f"s_cbranch_scc1 {sk}")
        a(f"s_lshl_b32 s{sA}, s2, 10")
        a(f"s_add_u32 s{sA}, s{sA}, {0xC000000 + self.ridx*64}")
        a("s_mov_b64 exec, 1")
        a("v_mov_b32 v1, 0")
        for i in range(16):
            a(f"v_mov_b32 v2, s{STAMP0+2*min(i, self.nst-1)}")
            a(f"buffer_store_dword v2, v1, {S(rWS)}, s{sA} offen offset:{4*i} sc1")
            a("s_nop 1")
        a("s_mov_b64 exec, -1")
        a(f"{sk}:")

    def arrive(self, cnt, vaddr0, vone):
        self("s_mov_b64 exec, 1")
        self(f"ds_add_u32 v{vaddr0}, v{vone} offset:{4*cnt}")
        self("s_mov_b64 exec, -1")

    def await_cnt(self, cnt, n, vaddr0, vtmp, sdst=None):
        lp = self.label("cw")
        sd = sA if sdst is None else sdst
        bk = self.label("cb")
        self(f"s_mov_b32 s{sSPIN}, 0")
        self(f"{lp}:")
        self(f"ds_read_b32 v{vtmp}, v{vaddr0} offset:{4*cnt}")
        self(f"s_add_u32 s{sSPIN}, s{sSPIN}, 1")
        self(f"s_cmp_gt_u32 s{sSPIN}, {SPIN_MAX * 64}")
        self(f"s_cbranch_scc1 {bk}")
        self("s_waitcnt lgkmcnt(0)")
        self(f"v_readfirstlane_b32 s{sd}, v{vtmp}")
        self(f"s_cmp_lt_u32 s{sd}, {n}")
        self(f"s_cbranch_scc1 {lp}")
        self(f"{bk}:")
        self("s_waitcnt lgkmcnt(0)")

    def barrier(self):
        self("s_barrier")

    def store_fs(self, instrs):
        sl = self.label("sl")
        dn = self.label("dn")
        self(f"s_cmp_eq_u32 s{sFAST}, 0")
        self(f"s_cbranch_scc1 {sl}")
        for i in instrs:
            self(i)
        self(f"s_branch {dn}")
        self(f"{sl}:")
        self.shadow_begin()
        for i in instrs:
            self(i + " sc1")
        self.shadow_end()
        self(f"{dn}:")

    def poll_flags(self, voff, soff, nlanes, vtmp):
        lp = self.label("pf")
        bk = self.label("pb")
        self(f"s_mov_b64 exec, {hex((1 << nlanes) - 1)}")
        self(f"s_mov_b32 s{sSPIN}, 0")
        self(f"{lp}:")
        self(f"buffer_load_dword v{vtmp}, v{voff}, {S(rWS)}, s{soff} offen sc1")
        self(f"s_add_u32 s{sSPIN}, s{sSPIN}, 1")
        self(f"s_cmp_gt_u32 s{sSPIN}, {SPIN_MAX}")
        self(f"s_cbranch_scc1 {bk}")
        self("s_waitcnt vmcnt(0)")
        self(f"v_cmp_ne_u32 vcc, s{sT}, v{vtmp}")
        self(f"s_cbranch_vccnz {lp}")
        self(f"{bk}:")
        self("s_waitcnt vmcnt(0)")
        self("s_mov_b64 exec, -1")

    def load_tag(self, vtmp):
        self(f"v_mov_b32 v{vtmp}, 0")
        self(f"buffer_load_dword v{vtmp}, v{vtmp}, {S(rWS)}, 0 offen sc1")

    def make_tag(self, vtmp):
        self(f"v_readfirstlane_b32 s{sT}, v{vtmp}")
        self(f"s_add_u32 s{sT}, s{sT}, 0x01010101")


def mfma(d, a_, b_, c=None):
    cs = V(d, 16) if c is None else (c if isinstance(c, str) else V(c, 16))
    return f"v_mfma_f32_32x32x16_bf16 {V(d,16)}, {V(a_)}, {V(b_)}, {cs}"


def tr_pair(a, dst, vaddr, off, step):
    a(f"ds_read_b64_tr_b16 {V(dst,2)}, v{vaddr} offset:{off}")
    a(f"ds_read_b64_tr_b16 {V(dst+2,2)}, v{vaddr} offset:{off+step}")


def lane_fields(a, vh, vcg, vr4, vc4):
    a(f"v_lshrrev_b32 v{vh}, 5, v0")
    a(f"v_bfe_u32 v{vcg}, v0, 4, 1")
    a(f"v_bfe_u32 v{vr4}, v0, 2, 2")
    a(f"v_and_b32 v{vc4}, 3, v0")


def tr_addr(a, dst, pitch, hmul, chunk_expr, xor_expr, extra_cg, base, t):
    vh, vcg, vr4, vc4, t0, t1 = t
    lane_fields(a, vh, vcg, vr4, vc4)
    chunk_expr(a, t0, vh, vcg, vr4, vc4)
    if xor_expr is not None:
        xor_expr(a, t1, vh, vcg, vr4, vc4)
        a(f"v_xor_b32 v{t0}, v{t0}, v{t1}")
    a(f"v_lshlrev_b32 v{t0}, 4, v{t0}")
    a(f"v_and_b32 v{t1}, 1, v{vc4}")
    a(f"v_lshl_add_u32 v{t0}, v{t1}, 3, v{t0}")
    a(f"v_mul_u32_u24 v{t1}, {hmul}, v{vh}")
    a(f"v_add_u32 v{t1}, v{t1}, v{vr4}")
    a(f"v_mul_u32_u24 v{t1}, {pitch}, v{t1}")
    a(f"v_add_u32 v{t0}, v{t0}, v{t1}")
    if extra_cg:
        a(f"v_mul_u32_u24 v{t1}, {extra_cg}, v{vcg}")
        a(f"v_add_u32 v{t0}, v{t0}, v{t1}")
    if isinstance(base, str):
        a(f"v_add_u32 v{dst}, {base}, v{t0}")
    else:
        a(f"v_add_u32 v{dst}, {base}, v{t0}")


def hilo_A(a, d, src, t):
    a(f"v_and_b32 v{t}, 0xffff0000, v{src}")
    a(f"v_sub_f32 v{d+1}, v{src}, v{t}")
    a(f"v_cvt_pk_bf16_f32 v{d}, v{t}, v{d+1}")
    a(f"v_lshrrev_b32 v{d+1}, 16, v{t}")


def hilo_B(a, d, negmean, t):
    a(f"v_and_b32 v{t}, 0xffff0000, v{negmean}")
    a(f"v_sub_f32 v{d+1}, v{negmean}, v{t}")
    a(f"v_cvt_pk_bf16_f32 v{d+1}, v{d+1}, 0")
    a(f"v_cvt_pk_bf16_f32 v{d}, v{t}, v{t}")


def softmax16(a, p, e, out, sc0, sc1, t):
    mx0, mx1, mn0, mn1, u0, u1 = t
    for g, (mx, mn) in enumerate(((mx0, mn0), (mx1, mn1))):
        b = p + 8 * g
        a(f"v_max3_f32 v{mx}, v{b}, v{b+1}, v{b+2}")
        a(f"v_min3_f32 v{mn}, v{b}, v{b+1}, v{b+2}")
        a(f"v_max3_f32 v{mx}, v{mx}, v{b+3}, v{b+4}")
        a(f"v_min3_f32 v{mn}, v{mn}, v{b+3}, v{b+4}")
        a(f"v_max3_f32 v{mx}, v{mx}, v{b+5}, v{b+6}")
        a(f"v_min3_f32 v{mn}, v{mn}, v{b+5}, v{b+6}")
        a(f"v_max_f32 v{mx}, v{mx}, v{b+7}")
        a(f"v_min_f32 v{mn}, v{mn}, v{b+7}")
    a(f"v_permlane32_swap_b32 v{mx0}, v{mx1}")
    a(f"v_permlane32_swap_b32 v{mn0}, v{mn1}")
    a(f"v_max_f32 v{mx0}, v{mx0}, v{mx1}")
    a(f"v_min_f32 v{mn0}, v{mn0}, v{mn1}")
    a(f"v_mov_b32 v{mx1}, v{mx0}")
    a(f"v_mov_b32 v{mn1}, v{mn0}")
    a(f"v_permlane32_swap_b32 v{mx0}, v{mx1}")
    a(f"v_permlane32_swap_b32 v{mn0}, v{mn1}")
    a(f"v_mul_f32 v{mx0}, v{mx0}, v{sc0}")
    a(f"v_mul_f32 v{mx1}, v{mx1}, v{sc1}")
    a(f"v_mul_f32 v{mn0}, v{mn0}, v{sc0}")
    a(f"v_mul_f32 v{mn1}, v{mn1}, v{sc1}")
    for i in range(16):
        sc, mx, mn = (sc0, mx0, mn0) if i < 8 else (sc1, mx1, mn1)
        a(f"v_fma_f32 v{e+i}, v{p+i}, v{sc}, -v{mx}")
        a(f"v_fma_f32 v{p+i}, -v{p+i}, v{sc}, v{mn}")
    for i in range(16):
        a(f"v_exp_f32 v{e+i}, v{e+i}")
        a(f"v_exp_f32 v{p+i}, v{p+i}")
    for g in range(2):
        sp, sm = (mx0, mn0) if g == 0 else (mx1, mn1)
        b = 8 * g
        a(f"v_add_f32 v{sp}, v{e+b}, v{e+b+1}")
        a(f"v_add_f32 v{sm}, v{p+b}, v{p+b+1}")
        a(f"v_add_f32 v{u0}, v{e+b+2}, v{e+b+3}")
        a(f"v_add_f32 v{u1}, v{p+b+2}, v{p+b+3}")
        for k in (4, 6):
            a(f"v_add_f32 v{sp}, v{sp}, v{e+b+k}")
            a(f"v_add_f32 v{sm}, v{sm}, v{p+b+k}")
            a(f"v_add_f32 v{u0}, v{u0}, v{e+b+k+1}")
            a(f"v_add_f32 v{u1}, v{u1}, v{p+b+k+1}")
        a(f"v_add_f32 v{sp}, v{sp}, v{u0}")
        a(f"v_add_f32 v{sm}, v{sm}, v{u1}")
    a(f"v_permlane32_swap_b32 v{mx0}, v{mx1}")
    a(f"v_permlane32_swap_b32 v{mn0}, v{mn1}")
    a(f"v_add_f32 v{mx0}, v{mx0}, v{mx1}")
    a(f"v_add_f32 v{mn0}, v{mn0}, v{mn1}")
    a(f"v_rcp_f32 v{mx0}, v{mx0}")
    a(f"v_rcp_f32 v{mn0}, v{mn0}")
    a(f"v_mov_b32 v{mx1}, v{mx0}")
    a(f"v_mov_b32 v{mn1}, v{mn0}")
    a(f"v_permlane32_swap_b32 v{mx0}, v{mx1}")
    a(f"v_permlane32_swap_b32 v{mn0}, v{mn1}")
    for g in range(2):
        rp, rm = (mx0, mn0) if g == 0 else (mx1, mn1)
        b = 8 * g
        for i in range(8):
            a(f"v_mul_f32 v{e+b+i}, v{e+b+i}, v{rp}")
            a(f"v_mul_f32 v{p+b+i}, v{p+b+i}, v{rm}")
        for w in range(4):
            a(f"v_cvt_pk_bf16_f32 v{out+8*g+w}, v{e+b+2*w}, v{e+b+2*w+1}")
            a(f"v_cvt_pk_bf16_f32 v{out+8*g+4+w}, v{p+b+2*w}, v{p+b+2*w+1}")


def cvt16(a, dst, src, n=16):
    for w in range(n // 2):
        a(f"v_cvt_pk_bf16_f32 v{dst+w}, v{src+2*w}, v{src+2*w+1}")


def prologue():
    a = Stream("pro")
    a("s_cmp_ge_u32 s2, 256")
    a("s_cbranch_scc1 L_END", tag="nopad")
    if STAMPS:
        a(f"s_memrealtime s[{STAMP0}:{STAMP0+1}]", tag="stamp")
    a("s_load_dwordx16 s[48:63], s[0:1], 0")
    a("s_load_dwordx2 s[44:45], s[0:1], 64")
    a("s_load_dwordx2 s[46:47], s[0:1], 80")
    a("v_lshrrev_b32 v1, 6, v0")
    a("v_and_b32 v0, 63, v0")
    a(f"v_readfirstlane_b32 s{sWAVE}, v1")
    a(f"s_and_b32 s{sXCD}, s2, 7")
    a(f"s_lshr_b32 s{sJ}, s2, 3")
    a(f"s_and_b32 s{sQUAD}, s{sJ}, 7")
    a(f"s_lshr_b32 s{sRB64}, s{sJ}, 3")
    a(f"s_cmp_lt_u32 s{sWAVE}, 4")
    a("s_cbranch_scc1 C_ENTRY", tag="nopad")
    a(f"s_cmp_eq_u32 s{sWAVE}, 6")
    a("s_cbranch_scc1 AX_ENTRY", tag="nopad")
    a(f"s_cmp_eq_u32 s{sWAVE}, 7")
    a("s_cbranch_scc1 SY_ENTRY", tag="nopad")
    return a


def l_init(a):
    a(f"v_mov_b32 v8, 0")
    a(f"v_mov_b32 v9, 0")
    a(f"v_mov_b32 v10, 0x3f803f80")
    a(f"v_mov_b32 v13, {SC}")
    a(f"v_mov_b32 v14, 1")
    a(f"s_sub_u32 s{sA}, s{sWAVE}, 4")
    a(f"s_lshl_b32 s{sA}, s{sA}, 4")
    a(f"v_and_b32 v1, 15, v0")
    a(f"v_add_u32 v1, s{sA}, v1")
    a(f"v_bfe_u32 v2, v1, 1, 3")
    a(f"v_lshrrev_b32 v3, 4, v0")
    a(f"v_xor_b32 v2, v2, v3")
    a(f"v_lshlrev_b32 v2, 4, v2")
    a(f"v_lshl_add_u32 v11, v1, 7, v2")
    a(f"v_xor_b32 v12, 64, v11")


def l_stats_chunk(a, n):
    slot = n % 6
    if n == 3:
        a(f"v_add_u32 v11, {3*P1SLOT}, v11")
        a(f"v_add_u32 v12, {3*P1SLOT}, v12")
    if n == 6:
        a(f"v_subrev_u32 v11, {3*P1SLOT}, v11")
        a(f"v_subrev_u32 v12, {3*P1SLOT}, v12")
    off = (slot % 3) * P1SLOT
    a(f"ds_read_b128 v[16:19], v11 offset:{off}")
    a(f"ds_read_b128 v[20:23], v12 offset:{off}")
    for r in range(16, 24):
        a(f"v_dot2_f32_bf16 v8, v{r}, v10, v8")
        a(f"v_dot2_f32_bf16 v9, v{r}, v{r}, v9")


def l_stats_final(a):
    a("v_permlane32_swap_b32 v8, v9")
    a("v_add_f32 v8, v8, v9")
    a("v_mov_b32 v9, v8")
    a("v_permlane16_swap_b32 v8, v9")
    a("v_add_f32 v8, v8, v9")
    a("v_mov_b32 v9, v8")
    a("v_permlane32_swap_b32 v8, v9")
    a("v_mul_f32 v1, 0xbb000000, v8")
    a("v_mul_f32 v2, 0x3b000000, v9")
    a("v_fma_f32 v2, -v1, v1, v2")
    a("v_add_f32 v2, 0x3727c5ac, v2")
    a("v_rsq_f32 v6, v2")
    hilo_B(a, 4, 1, 3)
    a("v_mul_f32 v7, 0x3fb8aa3b, v6")
    a(f"s_sub_u32 s{sA}, s{sWAVE}, 4")
    a(f"s_lshl_b32 s{sA}, s{sA}, 8")
    a(f"s_add_u32 s{sA}, s{sA}, {SC+SC_STAT}")
    a("v_and_b32 v1, 15, v0")
    a(f"v_lshlrev_b32 v1, 4, v1")
    a(f"v_add_u32 v1, s{sA}, v1")
    a("s_mov_b64 exec, 0xffff")
    a("ds_write_b128 v1, v[4:7]")
    a("s_mov_b64 exec, -1")
    a("s_waitcnt lgkmcnt(0)")


def chunkA(a, d, vh, vcg, vr4, vc4):
    a(f"v_lshrrev_b32 v{d}, 1, v{vc4}")


def l_cs_init(a):
    a(f"s_sub_u32 s{sA}, s{sWAVE}, 4")
    a(f"s_lshl_b32 s{sB}, s{sA}, 5")
    tr_addr(a, 30, 96, 4, chunkA, None, AU_OFF, f"s{sB}", [1, 2, 3, 4, 5, 6])
    a(f"s_lshl_b32 s{sB}, s{sA}, 1")

    def chunkB(a, d, vh, vcg, vr4, vc4):
        a(f"v_lshrrev_b32 v{d}, 1, v{vc4}")
        a(f"v_add_u32 v{d}, s{sB}, v{d}")

    def xorB(a, d, vh, vcg, vr4, vc4):
        a(f"v_and_b32 v{d}, 2, v{vr4}")
        a(f"v_lshl_add_u32 v{d}, v{vcg}, 2, v{d}")
    tr_addr(a, 31, 128, 4, chunkB, xorB, 8192, 0, [1, 2, 3, 4, 5, 6])
    a(f"v_add_u32 v29, {A_SPLIT}, v30")
    a("v_add_u32 v28, 65536, v31")
    a("v_add_u32 v27, 131072, v31")
    a("v_mov_b32 v8, 0")


def l_cs_chunk(a, part, c):
    if part == "A":
        base, pitch = c * A_CH, 96
        regs = {0: 30, 1: 29}
    else:
        base, pitch = B_SLOT[c], 128
        regs = {0: 31, 1: 28, 2: 27}
    for s in range(4):
        o = base + s * 16 * pitch
        if part == "A":
            hi = 1 if c >= 4 else 0
            o -= hi * A_SPLIT
        else:
            hi = o >> 16
            o &= 0xffff
        assert 0 <= o and o + 8 * pitch < 65536
        tr_pair(a, 32 + 4 * s, regs[hi], o, 8 * pitch)
    for r in range(32, 48):
        a(f"v_dot2_f32_bf16 v8, v{r}, v10, v8")


def l_cs_final(a, tile0):
    hilo_A(a, 4, 8, 3)
    a(f"s_sub_u32 s{sA}, s{sWAVE}, {4 - tile0}")
    a(f"s_lshl_b32 s{sA}, s{sA}, 9")
    a(f"s_add_u32 s{sA}, s{sA}, {SC+SC_CS}")
    a(f"v_lshlrev_b32 v1, 3, v0")
    a(f"v_add_u32 v1, s{sA}, v1")
    a("ds_write_b64 v1, v[4:5]")
    a("v_mov_b32 v8, 0")
    a("s_waitcnt lgkmcnt(0)")


def l_p3_p4(a, hookA=None, hookB=None, hookD=None, doA=True, endearly=True):
    a.barrier()
    if hookA:
        hookA(-1)
    if doA:
        l_cs_chunk(a, "A", 0)
    for c in range(8):
        if c < 7:
            if doA:
                l_cs_chunk(a, "A", c + 1)
                if c == 6:
                    l_cs_final(a, 0)
        else:
            l_cs_chunk(a, "B", 0)
        if hookA:
            hookA(c, pre=True)
        a("s_waitcnt lgkmcnt(0)")
        a.barrier()
        if hookA:
            hookA(c)
    for c in range(8):
        if c < 7:
            l_cs_chunk(a, "B", c + 1)
            if c == 6:
                l_cs_final(a, 3)
        if hookB:
            hookB(c, pre=True)
        a("s_waitcnt lgkmcnt(0)")
        a.barrier()
        if hookB:
            hookB(c)
    if hookD is None:
        return
    for c in range(5):
        hookD(c, pre=True)
        a.barrier()
        hookD(c)


def gen_LD():
    a = Role("LD", 1)
    if STAMPS:
        a.nst = 1
        a.stnames.append("start")
    vX, vK, vVv, vQ, vO, vA, vB, vD = 48, 52, 56, 60, 64, 68, 76, 80
    sI, sL4, sXb, sWb, sCk, sXo, sWo, sSt = 44, 45, 46, 47, 48, 49, 50, 51
    a("v_lshrrev_b32 v1, 3, v0")
    a("v_and_b32 v2, 7, v0")
    a("v_lshrrev_b32 v3, 4, v0")
    a("v_and_b32 v4, 1, v3")
    a("v_xor_b32 v5, v2, v3")
    a("v_lshlrev_b32 v5, 4, v5")
    a("v_lshl_add_u32 v5, v1, 10, v5")
    a("v_xor_b32 v6, 64, v5")
    for q in range(4):
        a(f"v_add_u32 v{vX+q}, {q*(8192-1024)}, v{5 + (q & 1)}")
    a("v_mul_u32_u24 v5, 3072, v1")
    a("v_lshlrev_b32 v6, 1, v4")
    a("v_xor_b32 v6, v2, v6")
    a("v_lshl_add_u32 v6, v6, 4, v5")
    a("v_xor_b32 v7, 64, v6")
    for q in range(4):
        a(f"v_add_u32 v{vK+q}, {q*(24576-1024)}, v6")
        a(f"v_add_u32 v{vVv+q}, {q*(24576-1024)}, v7")
    a("s_waitcnt lgkmcnt(0)")
    mk_srd(a, rX, "x")
    mk_srd(a, rW, "w")
    mk_srd(a, rWO, "wo")
    mk_srd(a, rWD, "wd")
    if STAMPS:
        mk_srd(a, rWS, "ws")
    a(f"s_cmp_eq_u32 s{sWAVE}, 4")
    a(f"s_cselect_b32 s{rWG}, s{PTR['wg']}, s{PTR['wu']}")
    a(f"s_cselect_b32 s{rWG+1}, s{PTR['wg']+1}, s{PTR['wu']+1}")
    a(f"s_and_b32 s{rWG+1}, s{rWG+1}, 0xffff")
    a(f"s_mov_b32 s{rWG+2}, {SIZES['wg']}")
    a(f"s_mov_b32 s{rWG+3}, 0x20000")
    a(f"s_sub_u32 s{sI}, s{sWAVE}, 4")
    a(f"s_lshl_b32 s{sL4}, s{sI}, 12")
    a(f"s_lshl_b32 s{sXb}, s{sXCD}, 18")
    a(f"s_lshl_b32 s{sA}, s{sRB64}, 16")
    a(f"s_add_u32 s{sXb}, s{sXb}, s{sA}")
    a(f"s_lshl_b32 s{sA}, s{sI}, 15")
    a(f"s_add_u32 s{sXb}, s{sXb}, s{sA}")
    a(f"s_mul_i32 s{sWb}, s{sI}, {32*3072}")
    a(f"s_lshl_b32 s{sA}, s{sQUAD}, 7")
    a(f"s_add_u32 s{sWb}, s{sWb}, s{sA}")
    a(f"s_lshl_b32 s{sSt}, s{sRB64}, 1")
    a(f"s_add_u32 s{sSt}, s{sSt}, s{sQUAD}")

    def dma4(srd, vr, soff, lds, n=4, swave=None):
        sw = sL4 if swave is None else swave
        a(f"s_add_u32 m0, s{sw}, {lds}")
        for q in range(n):
            o = f" offset:{q*1024}" if q else ""
            a(f"buffer_load_dwordx4 v{vr+q}, {S(srd)}, s{soff} offen{o} lds")

    def rot(n):
        a(f"s_add_u32 s{sCk}, s{sSt}, {n}")
        a(f"s_and_b32 s{sCk}, s{sCk}, 7")

    def p1chunk(n):
        slot = (n % 6) * P1SLOT
        rot(n)
        a(f"s_lshl_b32 s{sXo}, s{sCk}, 7")
        a(f"s_add_u32 s{sXo}, s{sXo}, s{sXb}")
        a(f"s_mul_i32 s{sWo}, s{sCk}, {64*3072}")
        a(f"s_add_u32 s{sWo}, s{sWo}, s{sWb}")
        dma4(rX, vX, sXo, slot)
        a(f"s_add_u32 s{sA}, s{sWo}, 1024")
        dma4(rW, vK, sA, slot + 8192)
        a(f"s_add_u32 s{sA}, s{sWo}, 2048")
        dma4(rW, vVv, sA, slot + 16384)
        return a.mark()

    tk = {}
    for n in range(5):
        tk[n] = p1chunk(n)
    a.stamp("issued5")
    l_init(a)
    a("v_lshrrev_b32 v1, 3, v0")
    a("v_and_b32 v2, 7, v0")
    a("v_bfe_u32 v4, v0, 4, 1")
    a("v_lshlrev_b32 v6, 2, v4")
    a("v_xor_b32 v6, v2, v6")
    a("v_lshlrev_b32 v6, 4, v6")
    a("v_mul_u32_u24 v5, 3072, v1")
    a("v_add_u32 v5, v5, v6")
    a("v_lshl_add_u32 v7, v1, 10, v6")
    for q in range(4):
        a(f"v_add_u32 v{vQ+q}, {q*(24576-1024)}, v5")
        a(f"v_add_u32 v{vD+q}, {q*(8192-1024)}, v7")
    a("v_lshlrev_b32 v6, 1, v4")
    a(f"s_lshl_b32 s{sA}, s{sI}, 2")
    a(f"v_add_u32 v6, s{sA}, v6")
    a("v_xor_b32 v6, v2, v6")
    a("v_mul_u32_u24 v5, 3584, v1")
    a("v_lshl_add_u32 v5, v6, 4, v5")
    for q in range(4):
        a(f"v_add_u32 v{vB+q}, {q*(28672-1024)}, v5")
    a("v_lshrrev_b32 v1, 4, v0")
    a("v_and_b32 v2, 15, v0")
    a("v_lshlrev_b32 v3, 2, v1")
    a("v_xor_b32 v2, v2, v3")
    a("v_lshlrev_b32 v2, 4, v2")
    a("v_lshl_add_u32 v2, v1, 10, v2")
    for q in range(4):
        a(f"v_add_u32 v{vO+q}, {q*(4096-1024)}, v2")
    a(f"s_mov_b32 s{sA}, {(65536+5)//6}")
    for n in range(6):
        a(f"v_add_u32 v1, {64*n}, v0")
        a(f"v_mul_lo_u32 v2, v1, s{sA}")
        a("v_lshrrev_b32 v2, 16, v2")
        a("v_mul_u32_u24 v3, 6, v2")
        a("v_sub_u32 v3, v1, v3")
        a("v_mul_u32_u24 v2, 3584, v2")
        a("v_lshl_add_u32 v2, v3, 4, v2")
        if n % 4:
            a(f"v_subrev_u32 v{vA+n}, {(n%4)*1024}, v2")
        else:
            a(f"v_mov_b32 v{vA+n}, v2")
    tk[5] = p1chunk(5)

    def wq(n):
        rot(n)
        a(f"s_mul_i32 s{sWo}, s{sCk}, {64*3072}")
        a(f"s_add_u32 s{sWo}, s{sWo}, s{sWb}")
        dma4(rW, vQ, sWo, WQ_BASE + n * 8192)

    sWoB = 52
    a(f"s_and_b32 s{sA}, s{sQUAD}, 3")
    a(f"s_lshl_b32 s{sA}, s{sA}, 8")
    a(f"s_lshl_b32 s{sWoB}, s{sI}, 14")
    a(f"s_add_u32 s{sWoB}, s{sWoB}, s{sA}")

    def wo(p):
        a(f"s_add_u32 s{sA}, s{sWoB}, {p*32768}")
        dma4(rWO, vO, sA, WO_LDS[p])

    tq = None
    for n in range(8):
        a.wait_vm(tk[n])
        if n == 0:
            a.stamp("c0")
        if n == 7:
            a.stamp("c7")
        a.barrier()
        if n == 1:
            tk[6] = p1chunk(6)
        if n == 2:
            tk[7] = p1chunk(7)
        if n == 3:
            for k in range(0, 3):
                wq(k)
        if n == 4:
            for k in range(3, 6):
                wq(k)
        if n == 5:
            for k in range(6, 8):
                wq(k)
            tq = a.mark()
            wo(9)
            wo(10)
        if n == 6:
            for p in range(0, 3):
                wo(p)
        if n == 7:
            for p in range(3, 6):
                wo(p)
        l_stats_chunk(a, n)
    l_stats_final(a)
    a.barrier()
    for p in range(6, 9):
        wo(p)
    tw1 = a.mark()
    a.wait_vm(tq)
    a.arrive(C_WQ, 13, 14)
    a.stamp("wq")
    a.await_cnt(C_QDONE, 4, 13, 1)
    for p in range(11, 16):
        wo(p)
    tw2 = a.mark()
    a.wait_vm(tw2)
    a.arrive(C_WO, 13, 14)
    a.stamp("wo")
    sM, sR3, sAb, sBb, sLA, sLB, sDb = 53, 54, 55, 56, 57, 58, 59
    a(f"s_and_b32 s{sM}, s{sJ}, 15")
    a(f"s_lshr_b32 s{sR3}, s{sJ}, 4")
    a(f"s_lshl_b32 s{sR3}, s{sR3}, 2")
    a(f"s_mul_i32 s{sAb}, s{sM}, 96")
    a(f"s_add_u32 s{sAb}, s{sAb}, 2048")
    a(f"s_lshl_b32 s{sBb}, s{sM}, 7")
    a(f"s_mul_i32 s{sLA}, s{sI}, {AU_OFF}")
    a(f"s_lshl_b32 s{sLB}, s{sI}, 13")
    a(f"s_lshl_b32 s{sDb}, s{sI}, 16")
    a(f"s_lshl_b32 s{sA}, s{sQUAD}, 7")
    a(f"s_add_u32 s{sDb}, s{sDb}, s{sA}")
    l_cs_init(a)

    def rot3(c, sb):
        a(f"s_add_u32 s{sCk}, s{sR3}, {c}")
        a(f"s_and_b32 s{sCk}, s{sCk}, 7")
        a(f"s_mul_i32 s{sCk}, s{sCk}, {64*3584}")
        a(f"s_add_u32 s{sCk}, s{sCk}, s{sb}")

    def ldA(c):
        rot3(c, sAb)
        dma4(rWG, vA, sCk, c * A_CH, 4, sLA)
        dma4(rWG, vA + 4, sCk, c * A_CH + 4096, 2, sLA)

    def ldB(c):
        rot3(c, sBb)
        dma4(rWG, vB, sCk, B_SLOT[c], 4, sLB)
        a(f"s_add_u32 s{sCk}, s{sCk}, {4*28672}")
        dma4(rWG, vB, sCk, B_SLOT[c] + 4096, 4, sLB)
        return a.mark()

    def ldD(sc, kh):
        f0 = (1024 + 384 * kh + 128 * sc) if sc < 3 else (512 * kh + 128 * (sc - 3))
        for g in range(2):
            a(f"s_add_u32 s{sA}, s{sDb}, {f0*1024 + g*32768}")
            dma4(rWD, vD, sA, D_SLOT[(sc, kh)] + g * 4096, 4, sLB)
        return a.mark()

    a.await_cnt(C_WOREAD, 4, 13, 1)
    for c in range(8):
        ldA(c)
    tB = {0: ldB(0)}
    tD = {}
    a.wait_vm(tB[0])
    a.stamp("A")

    def hookA(c, pre=False):
        if pre:
            if c == 7:
                a.wait_vm(tB[1])
            return
        if c == -1:
            tB[1] = ldB(1)
            tB[2] = ldB(2)
        m = {1: 3, 2: 4, 3: 5, 5: 6, 6: 7}
        if c in m:
            tB[m[c]] = ldB(m[c])
        if c == 7:
            tD[(0, 0)] = ldD(0, 0)

    def hookB(c, pre=False):
        if pre:
            if c + 2 <= 7:
                a.wait_vm(tB[c + 2])
            if c == 6:
                a.wait_vm(tD[(0, 1)])
            if c == 7:
                a.wait_vm(tD[(1, 1)])
            return
        k = [(0, 1), (1, 0), (1, 1), (2, 0), (2, 1), (3, 0), (3, 1), (4, 0)][c]
        tD[k] = ldD(*k)

    def hookD(c, pre=False):
        if pre:
            a.wait_vm(tD[(c + 2, 1)])
            return
        for k in {0: [(4, 1), (5, 0)], 1: [(5, 1), (6, 0)], 2: [(6, 1)]}.get(c, []):
            tD[k] = ldD(*k)

    l_p3_p4(a, hookA, hookB, hookD)
    a.stamp("end")
    a.dump_stamps(4)
    a("s_endpgm")
    return a


def gen_AX():
    a = Role("AX", 2)
    a("AX_ENTRY:")
    if STAMPS:
        a.nst = 1
        a.stnames.append("start")
    l_init(a)
    a("v_mov_b32 v1, 0")
    a("v_lshlrev_b32 v2, 2, v0")
    a(f"v_add_u32 v2, {SC}, v2")
    a("ds_write_b32 v2, v1")
    a("v_lshlrev_b32 v40, 4, v0")
    a("v_lshlrev_b32 v41, 7, v0")
    a("s_waitcnt lgkmcnt(0)")
    mk_srd(a, rPHI, "phi")
    mk_srd(a, rWS, "ws")
    a(f"s_lshl_b32 s{sA}, s{sQUAD}, 11")
    a(f"s_mov_b32 m0, {SC+SC_PHI}")
    a(f"buffer_load_dwordx4 v40, {S(rPHI)}, s{sA} offen lds")
    a(f"buffer_load_dwordx4 v40, {S(rPHI)}, s{sA} offen offset:1024 lds")
    tphi = a.mark()
    sR64, sTb = 44, 45
    a(f"s_lshl_b32 s{sR64}, s{sXCD}, 2")
    a(f"s_add_u32 s{sR64}, s{sR64}, s{sRB64}")

    def pretouch():
        a(f"s_lshl_b32 s{sA}, s{sR64}, 16")
        a(f"s_lshl_b32 s{sB}, s{sQUAD}, 12")
        a(f"s_add_u32 s{sA}, s{sA}, s{sB}")
        a(f"s_add_u32 s{sA}, s{sA}, {WS_O}")
        a("v_and_b32 v1, 31, v0")
        a("v_lshlrev_b32 v1, 7, v1")
        a("v_lshrrev_b32 v2, 5, v0")
        a("v_lshl_add_u32 v1, v2, 15, v1")
        a(f"buffer_load_dword v42, v1, {S(rWS)}, s{sA} offen sc1")
        a(f"s_lshr_b32 s{sTb}, s{sQUAD}, 2")
        a(f"s_lshl_b32 s{sB}, s{sR64}, 1")
        a(f"s_add_u32 s{sTb}, s{sTb}, s{sB}")
        a(f"s_lshl_b32 s{sA}, s{sTb}, 15")
        a(f"s_and_b32 s{sB}, s{sQUAD}, 3")
        a(f"s_lshl_b32 s{sC}, s{sB}, 13")
        a(f"s_add_u32 s{sA}, s{sA}, s{sC}")
        a(f"s_add_u32 s{sA}, s{sA}, {WS_H}")
        a(f"buffer_load_dword v43, v41, {S(rWS)}, s{sA} offen sc1")
        a(f"s_lshl_b32 s{sA}, s{sTb}, 12")
        a(f"s_lshl_b32 s{sC}, s{sB}, 10")
        a(f"s_add_u32 s{sA}, s{sA}, s{sC}")
        a(f"s_add_u32 s{sA}, s{sA}, {WS_HST}")
        a("s_mov_b64 exec, 0xff")
        a(f"buffer_load_dword v44, v41, {S(rWS)}, s{sA} offen sc1")
        a("s_mov_b64 exec, 0xf")
        a(f"s_lshl_b32 s{sA}, s{sR64}, 7")
        a(f"s_add_u32 s{sA}, s{sA}, {WS_FLO}")
        a("v_lshlrev_b32 v1, 12, v0")
        a(f"buffer_load_dword v45, v1, {S(rWS)}, s{sA} offen sc1")
        a("s_mov_b64 exec, -1")
        a(f"s_lshr_b32 s{sA}, s{sR64}, 1")
        a(f"s_mul_i32 s{sA}, s{sA}, {4*112*1024}")
        a(f"s_and_b32 s{sB}, s{sJ}, 15")
        a(f"s_lshl_b32 s{sB}, s{sB}, 12")
        a(f"s_add_u32 s{sA}, s{sA}, s{sB}")
        a(f"s_add_u32 s{sA}, s{sA}, {WS_HH + 48*1024}")
        a("v_and_b32 v1, 31, v0")
        a("v_lshlrev_b32 v1, 7, v1")
        a("v_lshrrev_b32 v2, 5, v0")
        a(f"v_mul_u32_u24 v2, {112*1024}, v2")
        a("v_add_u32 v1, v1, v2")
        a(f"buffer_load_dword v46, v1, {S(rWS)}, s{sA} offen sc1")
        a(f"s_add_u32 s{sA}, s{sA}, {2*112*1024}")
        a(f"buffer_load_dword v47, v1, {S(rWS)}, s{sA} offen sc1")

    a.wait_vm(tphi)
    for n in range(8):
        a.barrier()
        if n == 2:
            pretouch()
        l_stats_chunk(a, n)
    l_stats_final(a)
    a.barrier()
    l_cs_init(a)
    a("s_waitcnt vmcnt(0)")
    l_p3_p4(a)
    a.stamp("end")
    a.dump_stamps(6)
    a("s_endpgm")
    return a


def gen_SY():
    a = Role("SY", 3)
    a("SY_ENTRY:")
    if STAMPS:
        a.nst = 1
        a.stnames.append("start")
    l_init(a)
    sR64, sG, sX = 44, 45, 47
    a("s_waitcnt lgkmcnt(0)")
    mk_srd(a, rWS, "ws")
    a.load_tag(40)
    a(f"s_getreg_b32 s{sX}, hwreg(HW_REG_XCC_ID)")
    a(f"s_and_b32 s{sX}, s{sX}, 15")
    a(f"s_lshl_b32 s{sR64}, s{sXCD}, 2")
    a(f"s_add_u32 s{sR64}, s{sR64}, s{sRB64}")
    a(f"s_lshr_b32 s{sG}, s{sR64}, 1")
    a(f"s_lshl_b32 s{sG}, s{sG}, 7")
    a(f"s_add_u32 s{sG}, s{sG}, {WS_XCC}")
    a.make_tag(40)
    a(f"s_and_b32 s{sA}, s{sT}, 0xfffffff0")
    a(f"s_or_b32 s{sX}, s{sX}, s{sA}")
    a(f"s_and_b32 s{sA}, s{sJ}, 15")
    a(f"s_lshl_b32 s{sA}, s{sA}, 2")
    a(f"v_mov_b32 v1, s{sA}")
    a(f"v_mov_b32 v2, s{sX}")
    a("s_mov_b64 exec, 1")
    a(f"buffer_store_dword v2, v1, {S(rWS)}, s{sG} offen sc1")
    a("s_mov_b64 exec, -1")
    for k in range(4):
        a(f"s_lshr_b32 s{sA}, s{sT}, {8*k}")
        a(f"v_mov_b32 v{44+k}, s{sA}")
    a("v_mov_b32 v48, 0xff")
    a("v_lshlrev_b32 v41, 2, v0")
    a("v_lshlrev_b32 v42, 4, v0")
    a("v_lshrrev_b32 v1, 4, v0")
    a(f"v_mul_u32_u24 v1, {KVP_STRIDE}, v1")
    a("v_and_b32 v2, 15, v0")
    a("v_lshl_add_u32 v50, v2, 4, v1")
    a("v_lshlrev_b32 v52, 4, v2")
    a("v_lshrrev_b32 v1, 3, v0")
    a(f"v_mul_u32_u24 v1, {KVP_STRIDE}, v1")
    a("v_and_b32 v2, 7, v0")
    a("v_lshl_add_u32 v51, v2, 4, v1")
    for n in range(8):
        a.barrier()
        l_stats_chunk(a, n)
    l_stats_final(a)
    a.barrier()
    a.stamp("b8")
    lp = a.label("xl")
    bk = a.label("xb")
    a("s_mov_b64 exec, 0xffff")
    a(f"s_mov_b32 s{sSPIN}, 0")
    a(f"{lp}:")
    a(f"buffer_load_dword v1, v41, {S(rWS)}, s{sG} offen sc1")
    a(f"s_add_u32 s{sSPIN}, s{sSPIN}, 1")
    a(f"s_cmp_gt_u32 s{sSPIN}, {SPIN_MAX}")
    a(f"s_cbranch_scc1 {bk}")
    a("s_waitcnt vmcnt(0)")
    a(f"v_xor_b32 v1, s{sX}, v1")
    a("v_cmp_lt_u32 vcc, 15, v1")
    a(f"s_cbranch_vccnz {lp}")
    a(f"{bk}:")
    a("s_waitcnt vmcnt(0)")
    a("v_cmp_ne_u32 vcc, 0, v1")
    a(f"s_cmp_eq_u64 vcc, 0")
    a(f"s_cselect_b32 s{sA}, 2, 1")
    if FORCE_SLOW:
        a(f"s_mov_b32 s{sA}, 1")
    a("s_mov_b64 exec, 1")
    a(f"v_mov_b32 v1, s{sA}")
    a(f"ds_write_b32 v13, v1 offset:{4*C_FAST}")
    a("s_mov_b64 exec, -1")
    sP, sFn = 48, 49
    a(f"s_mul_i32 s{sP}, s{sQUAD}, {32*KVP_STRIDE}")
    a(f"s_add_u32 s{sP}, s{sP}, {WS_KVP}")
    a(f"s_mul_i32 s{sFn}, s{sQUAD}, {KVP_STRIDE}")
    a(f"s_add_u32 s{sFn}, s{sFn}, {WS_KVF}")

    def reduce_block(vaddr, soff_extra_sgpr, nld, pstep, nsw, nst_lanes, vst):
        lp = a.label("hl")
        bk = a.label("hb")
        a(f"s_add_u32 s{sB}, s{sP}, s{soff_extra_sgpr}")
        a(f"s_mov_b32 s{sSPIN}, 0")
        a(f"{lp}:")
        for n in range(nld):
            a(f"s_add_u32 s{sA}, s{sB}, {n*pstep*KVP_STRIDE}")
            a(f"buffer_load_dwordx4 {V(64+4*n)}, v{vaddr}, {S(rWS)}, s{sA} offen sc1")
        a(f"s_add_u32 s{sSPIN}, s{sSPIN}, 1")
        a(f"s_cmp_gt_u32 s{sSPIN}, {SPIN_MAX}")
        a(f"s_cbranch_scc1 {bk}")
        a("v_mov_b32 v1, 0")
        for n in range(nld):
            for k in range(4):
                a(f"v_bitop3_b32 v1, v1, v{64+4*n+k}, v{44+k} bitop3:0xf6")
        a("v_and_b32 v1, 0xff, v1")
        a("v_cmp_ne_u32 vcc, 0, v1")
        a(f"s_cbranch_vccnz {lp}")
        a(f"{bk}:")
        a("s_waitcnt vmcnt(0)")
        m = nld
        while m > 1:
            for n in range(m // 2):
                for k in range(4):
                    a(f"v_add_f32 v{64+4*n+k}, v{64+4*n+k}, v{64+4*(n+m//2)+k}")
            m //= 2
        for k in range(4):
            a(f"v_mov_b32 v{68+k}, v{64+k}")
        for k in range(4):
            a(f"v_permlane32_swap_b32 v{64+k}, v{68+k}")
        for k in range(4):
            a(f"v_add_f32 v{64+k}, v{64+k}, v{68+k}")
        for k in range(4):
            a(f"v_mov_b32 v{68+k}, v{64+k}")
        for k in range(4):
            a(f"v_permlane16_swap_b32 v{64+k}, v{68+k}")
        for k in range(4):
            a(f"v_add_f32 v{64+k}, v{64+k}, v{68+k}")
        if nsw == 3:
            for k in range(4):
                a(f"v_add_f32_dpp v{64+k}, v{64+k}, v{64+k} row_ror:8 row_mask:0xf bank_mask:0xf")
        for k in range(4):
            a(f"v_bfi_b32 v{64+k}, v48, v{44+k}, v{64+k}")
        a(f"s_add_u32 s{sA}, s{sFn}, s{soff_extra_sgpr}")
        a(f"s_mov_b64 exec, {hex((1 << nst_lanes) - 1)}")
        a(f"buffer_store_dwordx4 v[64:67], v{vst}, {S(rWS)}, s{sA} offen sc1")
        a("s_mov_b64 exec, -1")

    sO = 50
    a(f"s_lshl_b32 s{sO}, s{sR64}, 8")
    reduce_block(50, sO, 8, 4, 2, 16, 52)
    nz = a.label("nz")
    a(f"s_cmp_ge_u32 s{sR64}, 4")
    a(f"s_cbranch_scc1 {nz}")
    a(f"s_lshl_b32 s{sO}, s{sR64}, 7")
    a(f"s_add_u32 s{sO}, s{sO}, 8192")
    reduce_block(51, sO, 4, 8, 3, 8, 52)
    a(f"{nz}:")
    a("s_waitcnt vmcnt(0)")
    a.stamp("hop1")
    a(f"s_lshr_b32 s{sB}, s{sQUAD}, 2")
    a(f"s_lshl_b32 s{sA}, s{sR64}, 1")
    a(f"s_add_u32 s{sB}, s{sB}, s{sA}")
    a(f"s_lshl_b32 s{sC}, s{sB}, 6")
    a(f"s_add_u32 s{sC}, s{sC}, {WS_FLO}")
    a(f"s_lshl_b32 s{sO}, s{sB}, 15")
    a(f"s_add_u32 s{sO}, s{sO}, {WS_O}")
    a.await_cnt(C_WOREAD, 4, 13, 1)
    a.poll_flags(41, sC, 16, 1)
    a.stamp("s2")
    toks = []
    for g in range(8):
        a(f"s_mov_b32 m0, {O_LDS + g*4096}")
        a(f"s_add_u32 s{sA}, s{sO}, {g*4096}")
        for q in range(4):
            o = f" offset:{q*1024}" if q else ""
            a(f"buffer_load_dwordx4 v42, {S(rWS)}, s{sA} offen{o} sc1 lds")
        if g in (3, 7):
            toks.append(a.mark())
    a.wait_vm(toks[0])
    a.arrive(C_O, 13, 14)
    a.wait_vm(toks[1])
    a.arrive(C_O, 13, 14)
    a.stamp("odma")
    l_cs_init(a)
    l_p3_p4(a, doA=False)
    a.stamp("end")
    a.dump_stamps(7)
    a("s_endpgm")
    return a


def gen_C():
    a = Role("C", 0)
    a("C_ENTRY:")
    if STAMPS:
        a.nst = 1
        a.stnames.append("start")
    vCS, vONE2, vWA, vSCB, vTAG = 8, 9, 10, 11, 12
    v1i = 7
    AC0, AC1, VT0, VT1, XO, WF, XA, PL, PH, SL, SH, XK = 16, 32, 48, 64, 80, 88, 104, 112, 116, 120, 124, 128
    sR64, sTBQ, sHP = 44, 45, 46
    a("s_waitcnt lgkmcnt(0)")
    mk_srd(a, rWS, "ws")
    a.load_tag(15)
    mk_srd(a, rX, "x")
    mk_srd(a, rOUT, "out")
    a(f"s_lshl_b32 s{sR64}, s{sXCD}, 2")
    a(f"s_add_u32 s{sR64}, s{sR64}, s{sRB64}")
    a(f"s_and_b32 s{sTBQ}, s{sWAVE}, 1")
    a(f"s_lshr_b32 s{sHP}, s{sWAVE}, 1")
    a(f"v_mov_b32 v{vCS}, 0")
    a(f"v_mov_b32 v{vONE2}, 0x3f803f80")
    a(f"v_mov_b32 v{vSCB}, {SC}")
    a("v_and_b32 v1, 31, v0")
    a("v_lshrrev_b32 v2, 5, v0")
    a("v_bfe_u32 v3, v1, 1, 3")
    a("v_xor_b32 v3, v3, v2")
    a("v_lshlrev_b32 v3, 4, v3")
    a("v_lshl_add_u32 v3, v1, 7, v3")
    a(f"s_lshl_b32 s{sA}, s{sTBQ}, 12")
    a(f"v_add_u32 v3, s{sA}, v3")
    for t in range(4):
        a(f"v_xor_b32 v{XA+t}, {32*t}, v3")
        a(f"v_xor_b32 v{XA+4+t}, {32*t + 4096}, v3")
    a(f"s_lshl_b32 s{sB}, s{sWAVE}, 1")

    def chKV(a, d, vh, vcg, vr4, vc4):
        a(f"v_lshrrev_b32 v{d}, 1, v{vc4}")
        a(f"v_add_u32 v{d}, s{sB}, v{d}")

    def xorKV(a, d, vh, vcg, vr4, vc4):
        a(f"v_and_b32 v{d}, 2, v{vr4}")
        a(f"v_lshl_add_u32 v{d}, v{vcg}, 2, v{d}")
    tr_addr(a, vWA, 128, 8, chKV, xorKV, 8192, 8192, [1, 2, 3, 4, 5, 6])
    a("v_and_b32 v1, 31, v0")
    a("v_lshrrev_b32 v2, 5, v0")
    a("v_lshlrev_b32 v2, 2, v2")
    a("v_sub_u32 v1, v1, v2")
    a("v_mov_b32 v2, 0x3f80")
    a("v_mov_b32 v3, 0x3f800000")
    for base, add in ((SL, 0), (SH, 16)):
        for w, c in enumerate((0, 2, 8, 10)):
            a(f"v_cmp_eq_u32 vcc, {c+add}, v1")
            a(f"v_cndmask_b32 v{base+w}, 0, v2, vcc")
            a(f"v_cmp_eq_u32 vcc, {c+add+1}, v1")
            a(f"v_cndmask_b32 v{base+w}, v{base+w}, v3, vcc")
    a("v_bfe_u32 v1, v0, 4, 1")
    a("v_cvt_f32_u32 v1, v1")
    for r in range(32):
        a(f"v_mov_b32 v{VT0+r}, v1")
    a(f"v_mov_b32 v{v1i}, 1")

    def phi_operands(shead_lo, shead_hi):
        lane_fields(a, 1, 2, 3, 4)
        a("v_lshl_add_u32 v5, v1, 2, v3")
        a("v_lshlrev_b32 v5, 5, v5")
        a("v_lshl_add_u32 v5, v4, 3, v5")
        a(f"s_lshl_b32 s{sA}, s{shead_lo}, 9")
        a(f"s_lshl_b32 s{sB}, s{shead_hi}, 9")
        a(f"s_sub_u32 s{sB}, s{sB}, s{sA}")
        a(f"v_mul_lo_u32 v6, v2, s{sB}")
        a(f"v_add3_u32 v5, v5, v6, s{sA}")
        a(f"v_add_u32 v5, {SC+SC_PHI}, v5")
        tr_pair(a, XO, 5, 0, 256)
        a("v_cmp_eq_u32 vcc, 0, v2")
        for w in range(4):
            a(f"v_cndmask_b32 v{PL+w}, 0, v{XO+w}, vcc")
            a(f"v_cndmask_b32 v{PH+w}, v{XO+w}, 0, vcc")

    steps = [(n, t) for n in range(8) for t in range(4)]

    def p1_reads(i):
        n, t = steps[i]
        off = ((n % 6) % 3) * P1SLOT
        a(f"ds_read_b128 {V(XK+4*i)}, v{XA+t} offset:{off}")
        a(f"ds_read_b128 {V(XO+4*(i%2))}, v{XA+4+t} offset:{off}")
        tr_pair(a, WF + 4 * (i % 4), vWA, off + t * 2048, 512)

    for n in range(8):
        a.barrier()
        if n == 0:
            a.stamp("b0")
            phi_operands(sWAVE, sWAVE)
            a.make_tag(15)
            for k in range(4):
                a(f"s_lshr_b32 s{sA}, s{sT}, {8*k}")
                a(f"v_mov_b32 v{vTAG+k}, s{sA}")
        if n in (3, 6):
            op = "v_add_u32" if n == 3 else "v_subrev_u32"
            for r in list(range(XA, XA + 8)) + [vWA]:
                a(f"{op} v{r}, {3*P1SLOT}, v{r}")
        p1_reads(4 * n)
        for t in range(4):
            i = 4 * n + t
            if t < 3:
                p1_reads(i + 1)
            wf = WF + 4 * (i % 4)
            a(mfma(AC0, wf, XK + 4 * i, "0" if i == 0 else None))
            a(f"v_dot2_f32_bf16 v{vCS}, v{wf}, v{vONE2}, v{vCS}")
            a(f"v_dot2_f32_bf16 v{vCS}, v{wf+1}, v{vONE2}, v{vCS}")
            a(mfma(AC1, wf, XO + 4 * (i % 2), "0" if i == 0 else None))
            a(f"v_dot2_f32_bf16 v{vCS}, v{wf+2}, v{vONE2}, v{vCS}")
            a(f"v_dot2_f32_bf16 v{vCS}, v{wf+3}, v{vONE2}, v{vCS}")
    RA, MK, MO = WF, 96, 100
    hilo_A(a, RA, vCS, 1)
    a(f"v_mov_b32 v{RA+2}, 0")
    a(f"v_mov_b32 v{RA+3}, 0")
    a("v_and_b32 v1, 31, v0")
    a("v_lshlrev_b32 v1, 4, v1")
    a(f"s_lshl_b32 s{sA}, s{sTBQ}, 9")
    a(f"s_add_u32 s{sA}, s{sA}, {SC+SC_STAT}")
    a(f"v_add_u32 v1, s{sA}, v1")
    a("v_xor_b32 v2, 512, v1")
    a.stamp("p1a")
    a.barrier()
    a(f"ds_read_b128 {V(XA)}, v1")
    a(f"ds_read_b128 {V(XA+4)}, v2")
    for (m, s) in ((MK, XA), (MO, XA + 4)):
        a(f"v_mov_b32 v{m}, v{s}")
        a(f"v_mov_b32 v{m+1}, v{s+1}")
        a(f"v_mov_b32 v{m+2}, 0")
        a(f"v_mov_b32 v{m+3}, 0")
    a(mfma(AC0, RA, MK))
    a(mfma(AC1, RA, MO))
    KB, VB = 80, 88
    cvt16(a, KB, AC0, 8)
    for r in range(8, 16):
        a(f"v_mul_f32 v{AC0+r}, v{AC0+r}, v{XA+2}")
    cvt16(a, KB + 4, AC1, 8)
    for r in range(8, 16):
        a(f"v_mul_f32 v{AC1+r}, v{AC1+r}, v{XA+6}")
    cvt16(a, VB, AC0 + 8, 8)
    cvt16(a, VB + 4, AC1 + 8, 8)
    a(mfma(AC0, PL, KB, "0"))
    a(mfma(AC0, PH, KB + 4))
    a(mfma(VT0, VB, SL))
    a(mfma(VT1, VB + 4, SL))
    VTP = 112 - 0
    softmax16(a, AC0, AC1, 80, XA + 3, XA + 7, [1, 2, 3, 4, 5, 6])
    a(mfma(AC0, 80, SL, "0"))
    a(mfma(AC0, 84, SH))
    a(mfma(AC1, 88, SL, "0"))
    a(mfma(AC1, 92, SH))
    cvt16(a, VT0, VT0)
    cvt16(a, VT1, VT1)
    cvt16(a, 80, AC0)
    cvt16(a, 88, AC1)
    KV = AC0
    a(mfma(KV, 80, VT0, "0"))
    a(mfma(KV, 84, VT0 + 4))
    a(mfma(KV, 88, VT1))
    a(mfma(KV, 92, VT1 + 4))
    a("v_and_b32 v1, 31, v0")
    a("v_lshrrev_b32 v2, 5, v0")
    a("v_lshlrev_b32 v3, 4, v1")
    a("v_lshl_add_u32 v3, v2, 8, v3")
    a(f"s_lshl_b32 s{sA}, s{sWAVE}, 11")
    a(f"v_add_u32 v3, s{sA}, v3")
    a(f"s_lshl_b32 s{sA}, s{sWAVE}, 7")
    a(f"s_add_u32 s{sA}, s{sA}, 8192")
    a("v_lshlrev_b32 v4, 4, v2")
    a(f"v_add_u32 v4, s{sA}, v4")
    a("v_cmp_gt_u32 vcc, 16, v1")
    a("v_mov_b32 v5, 512")
    a("v_cndmask_b32 v3, v4, v3, vcc")
    a("v_cndmask_b32 v5, 32, v5, vcc")
    a("v_add_u32 v4, v3, v5")
    a("v_add_u32 v6, v4, v5")
    a("v_add_u32 v5, v6, v5")
    a(f"s_lshl_b32 s{sA}, s{sQUAD}, 5")
    a(f"s_add_u32 s{sA}, s{sA}, s{sR64}")
    a(f"s_mul_i32 s{sA}, s{sA}, {KVP_STRIDE}")
    a(f"s_add_u32 s{sA}, s{sA}, {WS_KVP}")
    a("v_mov_b32 v1, 0xff")
    a("s_mov_b32 exec_lo, 0x1ffff")
    a("s_mov_b32 exec_hi, 0x1ffff")
    for g, ad in enumerate((3, 4, 6, 5)):
        for k in range(4):
            a(f"v_bfi_b32 v{KV+4*g+k}, v1, v{vTAG+k}, v{KV+4*g+k}")
        a(f"buffer_store_dwordx4 {V(KV+4*g)}, v{ad}, {S(rWS)}, s{sA} offen sc1")
    a("s_mov_b64 exec, -1")
    a.stamp("kvpub")
    a(f"s_lshl_b32 s{sB}, s{sHP}, 2")

    def chQ(a, d, vh, vcg, vr4, vc4):
        a(f"v_lshrrev_b32 v{d}, 1, v{vc4}")
        a(f"v_lshl_add_u32 v{d}, v{vcg}, 1, v{d}")
        a(f"v_add_u32 v{d}, s{sB}, v{d}")

    def xorQ(a, d, vh, vcg, vr4, vc4):
        a(f"v_and_b32 v{d}, 2, v{vr4}")
        a(f"v_lshlrev_b32 v{d}, 1, v{d}")
    tr_addr(a, vWA, 128, 8, chQ, xorQ, 0, WQ_BASE, [1, 2, 3, 4, 5, 6])
    a(f"s_lshl_b32 s{sC}, s{sHP}, 1")
    a(f"s_add_u32 s{sD}, s{sC}, 1")
    phi_operands(sC, sD)
    a(f"v_mov_b32 v{vCS}, 0")
    a.await_cnt(C_WQ, 2, vSCB, 1)
    QF = 48
    NB = 6

    def q_read(i):
        tr_pair(a, QF + 4 * (i % NB), vWA, (i // 4) * 8192 + (i % 4) * 2048, 512)
    for i in range(NB - 1):
        q_read(i)
    for i in range(32):
        if i + NB - 1 < 32:
            q_read(i + NB - 1)
        wf = QF + 4 * (i % NB)
        a(mfma(AC0, wf, XK + 4 * i, "0" if i == 0 else None))
        for k in range(4):
            a(f"v_dot2_f32_bf16 v{vCS}, v{wf+k}, v{vONE2}, v{vCS}")
    a.arrive(C_QDONE, vSCB, v1i)
    hilo_A(a, 72, vCS, 1)
    a(f"v_mov_b32 v74, 0")
    a(f"v_mov_b32 v75, 0")
    a(mfma(AC0, 72, MK))
    cvt16(a, KB, AC0)
    a(mfma(AC0, PL, KB, "0"))
    a(mfma(AC0, PH, KB + 4))
    a.stamp("qgemm")
    sTB2 = 47
    a(f"s_lshr_b32 s{sTB2}, s{sQUAD}, 2")
    a(f"s_lshl_b32 s{sA}, s{sR64}, 1")
    a(f"s_add_u32 s{sTB2}, s{sTB2}, s{sA}")
    softmax16(a, AC0, AC1, 80, XA + 3, XA + 3, [1, 2, 3, 4, 5, 6])
    a.stamp("phiq")
    a(f"s_lshl_b32 s{sA}, s{sTB2}, 15")
    a(f"s_and_b32 s{sB}, s{sQUAD}, 3")
    a(f"s_lshl_b32 s{sB}, s{sB}, 8")
    a(f"s_add_u32 s{sA}, s{sA}, s{sB}")
    a(f"s_lshl_b32 s{sB}, s{sWAVE}, 6")
    a(f"s_add_u32 s{sA}, s{sA}, s{sB}")
    a("v_and_b32 v1, 31, v0")
    a("v_lshrrev_b32 v2, 5, v0")
    a("v_lshlrev_b32 v1, 10, v1")
    a("v_lshl_add_u32 v1, v2, 3, v1")
    for j in range(4):
        a(f"buffer_load_dwordx2 {V(112+2*j,2)}, v1, {S(rX)}, s{sA} offen offset:{16*j}")
    a(f"s_lshl_b32 s{sB}, s{sWAVE}, 2")

    def chO(a, d, vh, vcg, vr4, vc4):
        a(f"v_lshrrev_b32 v{d}, 1, v{vc4}")
        a(f"v_lshl_add_u32 v{d}, v{vcg}, 1, v{d}")
        a(f"v_add_u32 v{d}, s{sB}, v{d}")

    def xorO(a, d, vh, vcg, vr4, vc4):
        a(f"v_lshlrev_b32 v{d}, 2, v{vr4}")
    tr_addr(a, vWA, 256, 4, chO, xorO, 0, 0, [1, 2, 3, 4, 5, 6])
    a(f"v_add_u32 v2, 65536, v{vWA}")
    a(f"v_add_u32 v3, 131072, v{vWA}")
    a.await_cnt(C_WO, 2, vSCB, 1)
    for s in range(32):
        o = WO_LDS[s // 2] + (s % 2) * 4096
        tr_pair(a, XK + 4 * s, {0: vWA, 1: 2, 2: 3}[o >> 16], o & 0xffff, 2048)
    a("s_waitcnt lgkmcnt(0)")
    a.arrive(C_WOREAD, vSCB, v1i)
    a.stamp("woreg")
    a("v_and_b32 v1, 31, v0")
    a("v_lshrrev_b32 v2, 5, v0")
    a("v_lshlrev_b32 v3, 4, v1")
    a("v_lshl_add_u32 v3, v2, 8, v3")
    a(f"s_lshl_b32 s{sA}, s{sHP}, 12")
    a(f"v_add_u32 v3, s{sA}, v3")
    a(f"s_lshl_b32 s{sA}, s{sHP}, 8")
    a(f"s_add_u32 s{sA}, s{sA}, 8192")
    a("v_lshlrev_b32 v4, 4, v2")
    a(f"v_add_u32 v4, s{sA}, v4")
    a("v_cmp_gt_u32 vcc, 16, v1")
    a("v_mov_b32 v5, 512")
    a("v_cndmask_b32 v104, v4, v3, vcc")
    a("v_cndmask_b32 v5, 32, v5, vcc")
    for g in range(1, 8):
        a(f"v_add_u32 v{104+g}, v{103+g}, v5")
    a(f"s_mul_i32 s{sB}, s{sQUAD}, {KVP_STRIDE}")
    a(f"s_add_u32 s{sB}, s{sB}, {WS_KVF}")
    a.await_cnt(C_FAST, 1, vSCB, 1, sdst=sFAST)
    a(f"s_sub_u32 s{sFAST}, s{sFAST}, 1")
    lp = a.label("h2")
    bk = a.label("h2b")
    a(f"s_mov_b32 s{sSPIN}, 0")
    a(f"{lp}:")
    for g in range(8):
        a(f"buffer_load_dwordx4 {V(16+4*g)}, v{104+g}, {S(rWS)}, s{sB} offen sc1")
    a(f"s_add_u32 s{sSPIN}, s{sSPIN}, 1")
    a(f"s_cmp_gt_u32 s{sSPIN}, {SPIN_MAX}")
    a(f"s_cbranch_scc1 {bk}")
    a("v_mov_b32 v1, 0")
    for r in range(32):
        a(f"v_bitop3_b32 v1, v1, v{16+r}, v{vTAG+(r%4)} bitop3:0xf6")
    a("v_and_b32 v1, 0xff, v1")
    a("v_cmp_ne_u32 vcc, 0, v1")
    a(f"s_cbranch_vccnz {lp}")
    a(f"{bk}:")
    a("s_waitcnt vmcnt(0)")
    a.stamp("hop2")
    cvt16(a, 96, 16, 32)
    a(mfma(48, 96, 80, "0"))
    a(mfma(48, 100, 84))
    a(mfma(64, 104, 88, "0"))
    a(mfma(64, 108, 92))
    a(f"s_lshl_b32 s{sA}, s{sR64}, 1")
    a(f"s_add_u32 s{sA}, s{sA}, s{sTBQ}")
    a(f"s_lshl_b32 s{sC}, s{sA}, 6")
    a(f"s_lshl_b32 s{sA}, s{sA}, 15")
    a(f"s_lshl_b32 s{sB}, s{sQUAD}, 1")
    a(f"s_add_u32 s{sB}, s{sB}, s{sHP}")
    a(f"s_lshl_b32 s{sD}, s{sB}, 2")
    a(f"s_add_u32 s{sC}, s{sC}, s{sD}")
    a(f"s_add_u32 s{sC}, s{sC}, {WS_FLO}")
    a(f"s_lshl_b32 s{sB}, s{sB}, 11")
    a(f"s_add_u32 s{sA}, s{sA}, s{sB}")
    a(f"s_add_u32 s{sA}, s{sA}, {WS_O}")
    vL16 = 6
    a(f"v_lshlrev_b32 v{vL16}, 4, v0")
    a(f"v_mov_b32 v5, s{sT}")
    a("v_mov_b32 v4, 0")
    for hd, d in enumerate((48, 64)):
        a(f"v_add_f32 v1, 0x358637bd, v{d+8}")
        a("v_rcp_f32 v1, v1")
        for r in range(8):
            a(f"v_mul_f32 v{d+r}, v{d+r}, v1")
        cvt16(a, 96 + 4 * hd, d, 8)
    a.store_fs([f"buffer_store_dwordx4 v[96:99], v{vL16}, {S(rWS)}, s{sA} offen",
                f"buffer_store_dwordx4 v[100:103], v{vL16}, {S(rWS)}, s{sA} offen offset:1024"])
    for j in range(4):
        for d in range(2):
            a(f"v_lshlrev_b32 v{AC0+4*j+2*d}, 16, v{112+2*j+d}")
            a(f"v_and_b32 v{AC0+4*j+2*d+1}, 0xffff0000, v{112+2*j+d}")
    a("s_waitcnt vmcnt(0)")
    a("s_mov_b64 exec, 1")
    a.store_fs([f"buffer_store_dword v5, v4, {S(rWS)}, s{sC} offen"])
    a("s_mov_b64 exec, -1")
    a.stamp("opub")
    a(f"v_add_u32 v2, {O_LDS}, v{vL16}")
    OF = 32
    NO = 8
    for half in range(2):
        a.await_cnt(C_O, half + 1, vSCB, 1)
        if half == 0:
            a.stamp("o0")
        for i in range(NO - 1):
            s = 16 * half + i
            a(f"ds_read_b128 {V(OF+4*(s%NO))}, v2 offset:{s*1024}")
        for i in range(16):
            s = 16 * half + i
            if i + NO - 1 < 16:
                s2 = s + NO - 1
                a(f"ds_read_b128 {V(OF+4*(s2%NO))}, v2 offset:{s2*1024}")
            a(mfma(AC0, XK + 4 * s, OF + 4 * (s % NO)))
    a(f"s_and_b32 s{sB}, s{sQUAD}, 3")
    a(f"s_lshl_b32 s{sB}, s{sB}, 2")
    a(f"s_add_u32 s{sB}, s{sB}, s{sWAVE}")
    a(f"s_lshl_b32 s{sA}, s{sTB2}, 15")
    a(f"s_lshl_b32 s{sC}, s{sB}, 11")
    a(f"s_add_u32 s{sA}, s{sA}, s{sC}")
    a(f"s_add_u32 s{sA}, s{sA}, {WS_H}")
    a(f"s_lshl_b32 s{sC}, s{sTB2}, 12")
    a(f"s_lshl_b32 s{sD}, s{sB}, 8")
    a(f"s_add_u32 s{sC}, s{sC}, s{sD}")
    a(f"s_add_u32 s{sC}, s{sC}, {WS_HST}")
    a(f"s_lshl_b32 s{sD}, s{sTB2}, 6")
    a(f"s_lshl_b32 s{sB}, s{sB}, 2")
    a(f"s_add_u32 s{sD}, s{sD}, s{sB}")
    a(f"s_add_u32 s{sD}, s{sD}, {WS_FLH}")
    vL4 = 3
    a(f"v_lshlrev_b32 v{vL4}, 2, v0")
    cvt16(a, 96, AC0)
    a.store_fs([f"buffer_store_dwordx4 v[96:99], v{vL16}, {S(rWS)}, s{sA} offen",
                f"buffer_store_dwordx4 v[100:103], v{vL16}, {S(rWS)}, s{sA} offen offset:1024"])
    a("v_mov_b32 v1, 0")
    a("v_mov_b32 v2, 0")
    for r in range(96, 104):
        a(f"v_dot2_f32_bf16 v1, v{r}, v{vONE2}, v1")
        a(f"v_dot2_f32_bf16 v2, v{r}, v{r}, v2")
    a("v_permlane32_swap_b32 v1, v2")
    a("v_add_f32 v1, v1, v2")
    a.store_fs([f"buffer_store_dword v1, v{vL4}, {S(rWS)}, s{sC} offen"])
    a("s_waitcnt vmcnt(0)")
    a("s_mov_b64 exec, 1")
    a.store_fs([f"buffer_store_dword v5, v4, {S(rWS)}, s{sD} offen"])
    ne = a.label("ne")
    a(f"s_or_b32 s{sA}, s2, s{sWAVE}")
    a(f"s_cmp_lg_u32 s{sA}, 0")
    a(f"s_cbranch_scc1 {ne}")
    a.shadow_begin()
    a(f"buffer_store_dword v5, v4, {S(rWS)}, 0 offen sc1")
    a.shadow_end()
    a(f"{ne}:")
    a("s_mov_b64 exec, -1")
    a.stamp("hpub")
    H = 128
    sTB3, sM, sH0, sH1 = 48, 49, 50, 51
    a(f"s_lshr_b32 s{sTB3}, s{sR64}, 1")
    a(f"s_lshl_b32 s{sTB3}, s{sTB3}, 2")
    a(f"s_add_u32 s{sTB3}, s{sTB3}, s{sWAVE}")
    a(f"s_and_b32 s{sM}, s{sJ}, 15")
    a(f"s_lshl_b32 s{sA}, s{sTB3}, 15")
    a(f"s_add_u32 s{sA}, s{sA}, {WS_H}")
    a(f"s_lshr_b32 s{sB}, s{sJ}, 4")
    a(f"s_lshl_b32 s{sB}, s{sB}, 14")
    a(f"s_add_u32 s{sH0}, s{sA}, s{sB}")
    a(f"s_xor_b32 s{sB}, s{sB}, 16384")
    a(f"s_add_u32 s{sH1}, s{sA}, s{sB}")
    a(f"s_lshl_b32 s{sC}, s{sTB3}, 6")
    a(f"s_add_u32 s{sC}, s{sC}, {WS_FLH}")
    vA0, vA1, vB0, vB1, vB2 = 10, 12, 13, 14, 15
    tr_addr(a, vA0, 96, 4, chunkA, None, AU_OFF, 0, [120, 121, 122, 123, 124, 125])

    def chB0(a, d, vh, vcg, vr4, vc4):
        a(f"v_lshrrev_b32 v{d}, 1, v{vc4}")

    def xorB(a, d, vh, vcg, vr4, vc4):
        a(f"v_and_b32 v{d}, 2, v{vr4}")
        a(f"v_lshl_add_u32 v{d}, v{vcg}, 2, v{d}")
    BT = 104
    tr_addr(a, vB0, 128, 4, chB0, xorB, 8192, 0, [120, 121, 122, 123, 124, 125])
    a(f"v_add_u32 v{vA1}, {A_SPLIT}, v{vA0}")
    for t in range(4):
        a(f"v_xor_b32 v{BT+t}, {32*t}, v{vB0}")
        a(f"v_add_u32 v{BT+t}, {B_SLOT[0]}, v{BT+t}")
    a.poll_flags(vL4, sC, 16, 1)
    a.stamp("s3")
    for g in range(8):
        a(f"s_add_u32 s{sA}, s{sH0 if g < 4 else sH1}, {(g%4)*4096}")
        for q in range(4):
            o = f" offset:{q*1024}" if q else ""
            a(f"buffer_load_dwordx4 {V(H+16*g+4*q)}, v{vL16}, {S(rWS)}, s{sA} offen{o} sc1")
    ST = 64
    a(f"s_lshl_b32 s{sA}, s{sTB3}, 12")
    a(f"s_add_u32 s{sA}, s{sA}, {WS_HST}")
    for k in range(16):
        a(f"buffer_load_dword v{ST+k}, v{vL4}, {S(rWS)}, s{sA} offen offset:{256*k} sc1")
    a.barrier()
    a.stamp("b10")
    ACC = [16, 32, 48, 64]
    FB = 80
    NF = 6
    MB, R2, CSO, PK, TMP = 108, 13, 112, 116, 120
    curB = [0]
    seqA = [("A", t, s) for s in range(32) for t in range(3)]
    LEAD = 4
    seqB = [("B", 3, s) for s in range(LEAD)] + [("B", t, s) for s in range(LEAD) for t in range(3)] \
        + [("B", t, s) for s in range(LEAD, 32) for t in range(4)]
    seq = seqA + seqB

    def w_read(i):
        p, t, s = seq[i]
        dst = FB + 4 * (i % NF)
        if p == "A":
            o = (s // 4) * A_CH + (s % 4) * 1536 + 32 * t
            hi = s // 4 >= 4
            o -= A_SPLIT if hi else 0
            assert 0 <= o and o + 768 < 65536
            tr_pair(a, dst, vA1 if hi else vA0, o, 768)
        else:
            c = s // 4
            if c != curB[0]:
                dlt = B_SLOT[c] - B_SLOT[curB[0]]
                for tt in range(4):
                    if dlt > 0:
                        a(f"v_add_u32 v{BT+tt}, {dlt}, v{BT+tt}")
                    else:
                        a(f"v_subrev_u32 v{BT+tt}, {-dlt}, v{BT+tt}")
                curB[0] = c
            tr_pair(a, dst, BT + t, (s % 4) * 2048, 1024)

    def accreg(p, t):
        return ACC[t]

    fill = {}

    def addfill(i, f):
        fill.setdefault(i, []).append(f)

    def spread(start, funcs, per=3):
        for k, f in enumerate(funcs):
            addfill(start + k // per, f)

    I = lambda s: (lambda: a(s))
    st = []
    m = 16
    while m > 1:
        for k in range(m // 2):
            st.append(I(f"v_add_f32 v{ST+k}, v{ST+k}, v{ST+k+m//2}"))
        m //= 2
    st += [I(f"v_mov_b32 v{ST+1}, v{ST}"), I(f"v_permlane32_swap_b32 v{ST}, v{ST+1}"),
           I(f"v_mul_f32 v{ST}, 0xbb000000, v{ST}"), I(f"v_mul_f32 v{ST+1}, 0x3b000000, v{ST+1}"),
           I(f"v_fma_f32 v{ST+1}, -v{ST}, v{ST}, v{ST+1}"), I(f"v_add_f32 v{ST+1}, 0x3727c5ac, v{ST+1}"),
           I(f"v_rcp_f32 v{R2}, v{ST+1}"),
           lambda: hilo_B(a, MB, ST, ST + 2),
           I(f"v_mov_b32 v{MB+2}, 0"), I(f"v_mov_b32 v{MB+3}, 0"),
           I(f"v_mov_b32 v{CSO+2}, 0"), I(f"v_mov_b32 v{CSO+3}, 0"),
           I(f"v_lshlrev_b32 v1, 3, v0"), I(f"v_add_u32 v1, {SC+SC_CS}, v1")]
    spread(60, st, 2)
    sHH, sFA = 52, 53
    addfill(50, I(f"s_mul_i32 s{sHH}, s{sTB3}, {112*1024}"))
    addfill(50, I(f"s_add_u32 s{sHH}, s{sHH}, {WS_HH}"))
    addfill(51, I(f"s_lshl_b32 s{sFA}, s{sTB3}, 6"))
    addfill(51, I(f"s_lshl_b32 s{sA}, s{sM}, 2"))
    addfill(51, I(f"s_add_u32 s{sFA}, s{sFA}, s{sA}"))

    def epi_ops(acc, tmp):
        ops = []
        for k in range(8):
            ops.append(I(f"v_mul_f32 v{tmp+k}, v{acc+k}, v{acc+8+k}"))
        for k in range(8):
            ops.append(I(f"v_mul_f32 v{tmp+k}, v{tmp+k}, v{R2}"))
        return ops

    nA = len(seqA)
    for i in range(NF - 1):
        w_read(i)
    tokA = [None]
    P4 = {}

    def emit_epi_A():
        pass

    for i, (p, t, s) in enumerate(seq):
        if i + NF - 1 < len(seq):
            w_read(i + NF - 1)
        first = (s == 0)
        a(mfma(accreg(p, t), FB + 4 * (i % NF), H + 4 * s, "0" if first else None))
        for f in fill.get(i, []):
            f()
        if p == "A" and t == 2 and s % 4 == 3:
            if s == 31:
                for tt in range(3):
                    a(f"ds_read_b64 {V(TMP+2*tt,2)}, v1 offset:{512*tt}")
            a.barrier()
            if s == 31:
                a.stamp("pA")
        if i == nA:
            for tt in range(3):
                a(f"v_mov_b32 v{CSO}, v{TMP+2*tt}")
                a(f"v_mov_b32 v{CSO+1}, v{TMP+2*tt+1}")
                a(mfma(ACC[tt], CSO, MB))
        if nA < i < nA + LEAD:
            tt = i - nA - 1
            for f in epi_ops(ACC[tt], TMP):
                f()
            cvt16(a, PK, TMP, 8)
            a(f"s_mul_i32 s{sA}, s{sM}, 3072")
            a(f"s_add_u32 s{sA}, s{sA}, s{sHH}")
            a(f"buffer_store_dwordx4 {V(PK)}, v{vL16}, {S(rWS)}, s{sA} offen offset:{1024*tt} sc1")
            if tt == 2:
                tokA[0] = a.mark()
        if p == "B" and ((s < LEAD and t == 2 and s == LEAD - 1) or (s >= LEAD and t == 3 and s % 4 == 3)):
            c = s // 4
            if c == 1:
                a.wait_vm(tokA[0])
                a(f"s_add_u32 s{sA}, s{sFA}, {WS_FLA}")
                a("s_mov_b64 exec, 1")
                a(f"buffer_store_dword v5, v4, {S(rWS)}, s{sA} offen sc1")
                a("s_mov_b64 exec, -1")
            if c == 7:
                for tt in range(4):
                    a(f"ds_read_b64 {V(TMP+2*tt,2)}, v1 offset:{512*(3+tt)}")
            a.barrier()
    a.stamp("pB")
    for tt in range(4):
        a(f"v_mov_b32 v{CSO}, v{TMP+2*tt}")
        a(f"v_mov_b32 v{CSO+1}, v{TMP+2*tt+1}")
        a(mfma(ACC[tt], CSO, MB))
    a(f"s_lshl_b32 s{sA}, s{sM}, 12")
    a(f"s_add_u32 s{sA}, s{sA}, s{sHH}")
    a(f"s_add_u32 s{sA}, s{sA}, {48*1024}")
    for tt in range(4):
        for f in epi_ops(ACC[tt], TMP):
            f()
        cvt16(a, 80 + 4 * tt, TMP, 8)
    a.store_fs([f"buffer_store_dwordx4 {V(80+4*tt)}, v{vL16}, {S(rWS)}, s{sA} offen offset:{1024*tt}"
                for tt in range(4)])
    a("s_waitcnt vmcnt(0)")
    a(f"s_add_u32 s{sA}, s{sFA}, {WS_FLB}")
    a("s_mov_b64 exec, 1")
    a.store_fs([f"buffer_store_dword v5, v4, {S(rWS)}, s{sA} offen"])
    a("s_mov_b64 exec, -1")
    sKH, sTB4, sHA, sHB = 54, 55, 56, 57
    a(f"s_lshr_b32 s{sKH}, s{sWAVE}, 1")
    a(f"s_and_b32 s{sTB4}, s{sWAVE}, 1")
    a(f"s_lshl_b32 s{sA}, s{sR64}, 1")
    a(f"s_add_u32 s{sTB4}, s{sTB4}, s{sA}")
    a(f"s_mul_i32 s{sHA}, s{sTB4}, {112*1024}")
    a(f"s_add_u32 s{sHA}, s{sHA}, {WS_HH}")
    a(f"s_lshl_b32 s{sA}, s{sKH}, 15")
    a(f"s_add_u32 s{sHB}, s{sHA}, s{sA}")
    a(f"s_add_u32 s{sHB}, s{sHB}, {48*1024}")
    a(f"s_mul_i32 s{sA}, s{sKH}, {24*1024}")
    a(f"s_add_u32 s{sHA}, s{sHA}, s{sA}")
    a(f"s_lshl_b32 s{sC}, s{sTB4}, 6")
    a(f"s_lshl_b32 s{sA}, s{sKH}, 5")
    a(f"s_add_u32 s{sC}, s{sC}, s{sA}")
    a(f"s_add_u32 s{sD}, s{sC}, {WS_FLB}")
    a(f"s_add_u32 s{sC}, s{sC}, {WS_FLA}")
    a(f"s_lshl_b32 s{sB}, s{sKH}, 2")
    DK, DS = 104, 105
    tr_addr(a, DK, 128, 4, chQ, xorQ, 0, 0, [106, 107, 108, 109, 110, 111])
    a(f"v_xor_b32 v{DS}, 64, v{DK}")
    a.poll_flags(vL4, sC, 8, 1)
    a.stamp("sA")
    HA = 128
    AK, AS = 224, 240
    for g in range(6):
        a(f"s_add_u32 s{sA}, s{sHA}, {g*4096}")
        for q in range(4):
            o = f" offset:{q*1024}" if q else ""
            a(f"buffer_load_dwordx4 {V(HA+16*g+4*q)}, v{vL16}, {S(rWS)}, s{sA} offen{o} sc1")
    RES = 112
    a(f"s_lshl_b32 s{sA}, s{sTB4}, 15")
    a(f"s_lshl_b32 s{sB}, s{sQUAD}, 12")
    a(f"s_add_u32 s{sA}, s{sA}, s{sB}")
    a(f"s_lshl_b32 s{sB}, s{sKH}, 11")
    a(f"s_add_u32 s{sA}, s{sA}, s{sB}")
    a(f"s_add_u32 s{sA}, s{sA}, {WS_H}")
    a(f"buffer_load_dwordx4 {V(RES)}, v{vL16}, {S(rWS)}, s{sA} offen sc1")
    a(f"buffer_load_dwordx4 {V(RES+4)}, v{vL16}, {S(rWS)}, s{sA} offen offset:1024 sc1")
    DA = 120

    def set_sc(sc):
        r = DA + 2 * (sc % 2)
        a(f"s_mul_i32 s{sA}, s{sKH}, {D_SLOT[(sc,1)] - D_SLOT[(sc,0)]}")
        a(f"s_add_u32 s{sA}, s{sA}, {D_SLOT[(sc,0)]}")
        a(f"v_add_u32 v{r}, s{sA}, v{DK}")
        a(f"v_add_u32 v{r+1}, s{sA}, v{DS}")

    def hh_reg(k):
        if k < 24:
            return HA + 4 * k
        b = k - 24
        if b < 16:
            return 16 + 4 * b
        return HA + 4 * (b - 16)

    DF = 80
    ND = 6
    seq4 = [(k, c) for k in range(56) for c in range(2)]

    def d_read(i):
        k, c = seq4[i]
        sc, s = k // 8, k % 8
        if c == 0 and s == 0:
            set_sc(sc)
        tr_pair(a, DF + 4 * (i % ND), DA + 2 * (sc % 2) + c, s * 2048, 1024)

    def loadB(b):
        if b % 4 == 0:
            a(f"s_add_u32 s{sE}, s{sHB}, {b*1024}")
        o = f" offset:{(b%4)*1024}" if b % 4 else ""
        a(f"buffer_load_dwordx4 {V(hh_reg(24+b))}, v{vL16}, {S(rWS)}, s{sE} offen{o} sc1")

    for i in range(ND - 1):
        d_read(i)
    for i, (k, c) in enumerate(seq4):
        if i + ND - 1 < len(seq4):
            d_read(i + ND - 1)
        if k == 12 and c == 0:
            a.poll_flags(vL4, sD, 8, 1)
            a.stamp("sB")
            for b in range(16):
                loadB(b)
            for b in range(16, 28):
                loadB(b)
        if c == 0 and 13 <= k <= 16:
            loadB(28 + k - 13)
        a(mfma(AK if c == 0 else AS, DF + 4 * (i % ND), hh_reg(k), "0" if k == 0 else None))
        if c == 1 and k % 8 == 7 and k // 8 < 5:
            a.barrier()
    a.stamp("p4")
    a(f"s_lshl_b32 s{sA}, s{sWAVE}, 12")
    a(f"s_add_u32 s{sA}, s{sA}, {X_LDS}")
    a(f"v_add_u32 v1, s{sA}, v{vL16}")
    a(f"v_xor_b32 v2, 8192, v1")
    for g in range(4):
        a(f"ds_write_b128 v1, {V(AS+4*g)} offset:{1024*g}")
    for w in range(8):
        a(f"v_lshlrev_b32 v{16+2*w}, 16, v{RES+w}")
        a(f"v_and_b32 v{17+2*w}, 0xffff0000, v{RES+w}")
    for r in range(16):
        a(f"v_add_f32 v{AK+r}, v{AK+r}, v{16+r}")
    a("s_waitcnt lgkmcnt(0)")
    a.barrier()
    for g in range(4):
        a(f"ds_read_b128 {V(32+4*g)}, v2 offset:{1024*g}")
    a(f"s_lshl_b32 s{sA}, s{sTB4}, 15")
    a(f"s_lshl_b32 s{sB}, s{sQUAD}, 7")
    a(f"s_add_u32 s{sA}, s{sA}, s{sB}")
    a(f"s_lshl_b32 s{sB}, s{sKH}, 6")
    a(f"s_add_u32 s{sA}, s{sA}, s{sB}")
    a("v_and_b32 v3, 31, v0")
    a("v_lshrrev_b32 v4, 5, v0")
    a("v_lshlrev_b32 v3, 10, v3")
    a("v_lshl_add_u32 v3, v4, 4, v3")
    for r in range(16):
        a(f"v_add_f32 v{AK+r}, v{AK+r}, v{32+r}")
    cvt16(a, 48, AK)
    for k in (0, 4):
        a(f"v_permlane32_swap_b32 v{48+k}, v{50+k}")
        a(f"v_permlane32_swap_b32 v{49+k}, v{51+k}")
        a(f"buffer_store_dwordx4 {V(48+k)}, v3, {S(rOUT)}, s{sA} offen offset:{8*k}")
    a.stamp("end")
    a.dump_stamps(0)
    a("s_endpgm")
    return a


def main():
    pro = prologue()
    roles = [gen_LD(), gen_AX(), gen_SY(), gen_C()]
    hdr = open(os.path.join(os.path.dirname(os.path.abspath(__file__)), "header.txt")).read()
    name = NAME + "_kernel"
    s = hdr + f"; @launch grid=(256,1,1) block=(512,1,1) lds=163840\n"
    s += '.amdgcn_target "amdgcn-amd-amdhsa--gfx950"\n.text\n'
    s += f".globl {name}\n.p2align 8\n.type {name},@function\n{name}:\n"
    s += pro.finalize()
    for r in roles:
        s += f"; ======== role {r.name} ========\n"
        if r.name != "LD":
            s += ".p2align 6\n"
        s += r.finalize()
    s += "L_END:\n    s_endpgm\n"
    s += f""".section .rodata,"a"
.p2align 6
.amdhsa_kernel {name}
  .amdhsa_next_free_vgpr 256
  .amdhsa_next_free_sgpr 102
  .amdhsa_accum_offset 256
  .amdhsa_group_segment_fixed_size 0
  .amdhsa_kernarg_size 88
  .amdhsa_user_sgpr_count 2
  .amdhsa_user_sgpr_kernarg_segment_ptr 1
  .amdhsa_system_sgpr_workgroup_id_x 1
.end_amdhsa_kernel
"""
    out = [x for x in sys.argv[1:] if not x.startswith("--")]
    open(out[0], "w").write(s)
    if STAMPS:
        import json
        json.dump({r.name: (r.ridx, r.stnames) for r in roles}, open(out[0] + ".stamps.json", "w"))


main()
```
